```python
import torch

def _softmax(x, axis=-1):
    return torch.softmax(x, dim=axis)
def _gelu(x):
    return torch.nn.functional.gelu(x, approximate="tanh")
def _silu(x):
    return torch.nn.functional.silu(x)
def _sigmoid(x):
    return torch.sigmoid(x)
def _layernorm(x, axis=-1, eps=1e-5):
    m = x.mean(dim=axis, keepdim=True)
    v = x.var(dim=axis, keepdim=True, unbiased=False)
    return (x - m) / torch.sqrt(v + eps)
def _scatter_add(tgt, idx, src, axis=0):
    return tgt.clone().index_add_(axis, idx, src)
def _segment_sum(src, seg, n):
    out = torch.zeros((n,) + src.shape[1:], dtype=src.dtype)
    return out.index_add_(0, seg, src)
def _pad(x, pw):
    flat = tuple(v for pair in reversed(pw) for v in pair)
    return torch.nn.functional.pad(x, flat)

kernel_name = 'standalone__mha_block_cached__near_ridge'

def setup_inputs():

    _w = (lambda a: (lambda t: t.to(torch.bfloat16) if t.is_floating_point() else t)(torch.as_tensor(a)))
    B, Sq, D = 8, 192, 448
    H, Sk, Dh = 16, 1024, 256
    return {
        "x": _w((lambda *s: torch.randn(*s, dtype=torch.bfloat16) * 0.8)(B, Sq, D)),
        "k_cache": _w((lambda *s: torch.randn(*s, dtype=torch.bfloat16) * 0.8)(B, H, Sk, Dh)),
        "v_cache": _w((lambda *s: torch.randn(*s, dtype=torch.bfloat16) * 0.05)(B, H, Sk, Dh)),
        "wq": _w((lambda *s: torch.randn(*s, dtype=torch.bfloat16) * 0.8)(D, H * Dh) * (D ** -0.5)),
        "wo": _w((lambda *s: torch.randn(*s, dtype=torch.bfloat16) * 0.05)(H * Dh, D) * ((H * Dh) ** -0.5)),
    }

def reference(x, k_cache, v_cache, wq, wo):
    B, Sq, D = x.shape
    H, Dh = 16, 256
    q = (lambda x, *d: x.permute(*d))((x @ wq).reshape(B, Sq, H, Dh), 0, 2, 1, 3)
    scores = torch.einsum("bhqd,bhkd->bhqk", q, k_cache) * (Dh ** -0.5)
    p = _softmax(scores, axis=-1)
    o = torch.einsum("bhqk,bhkd->bhqd", p, v_cache)
    return (lambda x, *d: x.permute(*d))(o, 0, 2, 1, 3).reshape(B, Sq, H * Dh) @ wo
```

```python
import re

def R(kind, lo, n=1):
    if n == 1:
        return f"{kind}{lo}", [f"{kind}{lo}"]
    return f"{kind}[{lo}:{lo+n-1}]", [f"{kind}{i}" for i in range(lo, lo + n)]

def regs_of(text):
    text = text.strip()
    m = re.fullmatch(r"-?([va])\[(\d+):(\d+)\]", text)
    if m:
        return [f"{m.group(1)}{i}" for i in range(int(m.group(2)), int(m.group(3)) + 1)]
    m = re.fullmatch(r"-?([va])(\d+)", text)
    if m:
        return [f"{m.group(1)}{m.group(2)}"]
    return []

class Asm:
    def __init__(self):
        self.lines = []
        self.pos = 0
        self.valu_w = {}
        self.trans_w = {}
        self.mfma_w = {}
        self.mfma_c = {}
        self.store_d = {}
        self.lds_q = []
        self.vm_q = []
        self.nnop = 0

    def raw(self, s):
        self.lines.append(s)

    def label(self, name):
        self.lines.append(f"{name}:")

    def _slot(self, s, n=1):
        self.lines.append("    " + s)
        self.pos += n

    def nop(self, n):
        while n > 0:
            k = min(n, 16)
            self._slot(f"s_nop {k-1}", k)
            self.nnop += k
            n -= k

    def _need(self, ppos, n):
        return n - (self.pos - ppos - 1)

    def _wait_lds(self, regs):
        idx = -1
        for i, e in enumerate(self.lds_q):
            if e & regs:
                idx = i
        if idx >= 0:
            n = len(self.lds_q) - 1 - idx
            n = min(n, 15)
            self._slot(f"s_waitcnt lgkmcnt({n})")
            self.lds_q = self.lds_q[len(self.lds_q) - n:] if n > 0 else []

    def _wait_vm(self, regs):
        idx = -1
        for i, e in enumerate(self.vm_q):
            if e & regs:
                idx = i
        if idx >= 0:
            n = len(self.vm_q) - 1 - idx
            n = min(n, 63)
            self._slot(f"s_waitcnt vmcnt({n})")
            self.vm_q = self.vm_q[len(self.vm_q) - n:] if n > 0 else []

    def wait_lgkm(self, n=0):
        self._slot(f"s_waitcnt lgkmcnt({n})")
        self.lds_q = self.lds_q[len(self.lds_q) - n:] if n > 0 else []

    def wait_vm(self, n=0):
        self._slot(f"s_waitcnt vmcnt({n})")
        self.vm_q = self.vm_q[len(self.vm_q) - n:] if n > 0 else []

    def ins(self, kind, text, reads=(), writes=(), srcc=(), passes=0):
        reads = set(reads); writes = set(writes); srcc = set(srcc)
        allr = reads | writes | srcc
        self._wait_lds(allr)
        self._wait_vm(allr)
        need = 0
        if kind == "mfma":
            for r in reads | srcc:
                if r in self.valu_w:
                    need = max(need, self._need(self.valu_w[r], 2))
            for r in reads:
                if r in self.mfma_w:
                    p, ps, _ = self.mfma_w[r]
                    need = max(need, self._need(p, 12 if ps == 8 else 8))
            ctuple = tuple(sorted(srcc))
            for r in srcc:
                if r in self.mfma_w:
                    p, ps, dr = self.mfma_w[r]
                    if dr == ctuple and ps == passes:
                        continue
                    need = max(need, self._need(p, 10 if ps == 8 else 6))
        else:
            for r in reads | writes:
                if r in self.mfma_w:
                    p, ps, _ = self.mfma_w[r]
                    need = max(need, self._need(p, 12 if ps == 8 else 8))
            if kind in ("valu", "trans", "permlane", "rfl"):
                for r in writes:
                    if r in self.mfma_c:
                        p, ps = self.mfma_c[r]
                        need = max(need, self._need(p, 7 if ps == 8 else 3))
                    if r in self.store_d:
                        need = max(need, self._need(self.store_d[r], 2))
            else:
                for r in writes:
                    if r in self.store_d:
                        need = max(need, self._need(self.store_d[r], 2))
            if kind in ("valu", "permlane", "rfl"):
                for r in reads:
                    if r in self.trans_w:
                        need = max(need, self._need(self.trans_w[r], 1))
            if kind == "permlane":
                for r in reads:
                    if r in self.valu_w:
                        need = max(need, self._need(self.valu_w[r], 2))
            if kind == "rfl":
                for r in reads:
                    if r in self.valu_w:
                        need = max(need, self._need(self.valu_w[r], 1))
        if need > 0:
            self.nop(need)
        p = self.pos
        self._slot(text)
        if kind in ("valu", "trans", "permlane"):
            for r in writes:
                self.valu_w[r] = p
                self.trans_w.pop(r, None)
                self.mfma_w.pop(r, None)
                if kind == "trans":
                    self.trans_w[r] = p
        elif kind == "mfma":
            dr = tuple(sorted(writes))
            for r in writes:
                self.mfma_w[r] = (p, passes, dr)
                self.valu_w.pop(r, None)
            for r in srcc:
                self.mfma_c[r] = (p, passes)
        elif kind == "dsr":
            self.lds_q.append(set(writes))
            for r in writes:
                self.valu_w.pop(r, None); self.mfma_w.pop(r, None); self.trans_w.pop(r, None)
        elif kind == "dsw":
            self.lds_q.append(set())
        elif kind == "vml":
            self.vm_q.append(set(writes))
            for r in writes:
                self.valu_w.pop(r, None); self.mfma_w.pop(r, None); self.trans_w.pop(r, None)
        elif kind == "vms":
            self.vm_q.append(set())
            for r in reads:
                self.store_d[r] = p
        return p

    def flush(self):
        need = 0
        for r, (p, ps, _) in self.mfma_w.items():
            need = max(need, self._need(p, 12 if ps == 8 else 8))
        for r, (p, ps) in self.mfma_c.items():
            need = max(need, self._need(p, 7 if ps == 8 else 3))
        for r, p in self.valu_w.items():
            need = max(need, self._need(p, 2))
        for r, p in self.store_d.items():
            need = max(need, self._need(p, 2))
        if need > 0:
            self.nop(need)

    def snapshot(self):
        import copy
        return copy.deepcopy((self.pos, self.valu_w, self.trans_w, self.mfma_w, self.mfma_c,
                              self.store_d, self.lds_q, self.vm_q))

    def restore(self, snap):
        import copy
        (self.pos, self.valu_w, self.trans_w, self.mfma_w, self.mfma_c,
         self.store_d, self.lds_q, self.vm_q) = copy.deepcopy(snap)

    def s(self, text):
        self._slot(text)

    def v(self, op, dst, *srcs, kind="valu", extra_reads=()):
        reads = []
        for x in srcs:
            reads += regs_of(x)
        reads += list(extra_reads)
        self.ins(kind, f"{op} {dst}, " + ", ".join(srcs), reads, regs_of(dst))

    def trans(self, op, dst, src):
        self.ins("trans", f"{op} {dst}, {src}", regs_of(src), regs_of(dst))

    def vcmp(self, op, dst, a, b):
        self.ins("valu", f"{op} {dst}, {a}, {b}", regs_of(a) + regs_of(b), [])

    def permswap32(self, a, b):
        self.ins("permlane", f"v_permlane32_swap_b32 {a}, {b}", regs_of(a) + regs_of(b), regs_of(a) + regs_of(b))

    def mfma32(self, d, a, b, c):
        self.ins("mfma", f"v_mfma_f32_32x32x16_bf16 {d}, {a}, {b}, {c}",
                 regs_of(a) + regs_of(b), regs_of(d), regs_of(c), passes=8)

    def mfma16(self, d, a, b, c):
        self.ins("mfma", f"v_mfma_f32_16x16x32_bf16 {d}, {a}, {b}, {c}",
                 regs_of(a) + regs_of(b), regs_of(d), regs_of(c), passes=4)

    def ds_read(self, op, dst, addr, off=0):
        o = f" offset:{off}" if off else ""
        self.ins("dsr", f"{op} {dst}, {addr}{o}", regs_of(addr), regs_of(dst))

    def ds_write(self, op, addr, data, off=0):
        o = f" offset:{off}" if off else ""
        self.ins("dsw", f"{op} {addr}, {data}{o}", regs_of(addr) + regs_of(data), [])

    def bload(self, op, dst, voff, srd, soff="0", off=0, flags=""):
        o = f" offset:{off}" if off else ""
        self.ins("vml", f"{op} {dst}, {voff}, {srd}, {soff} offen{o}{flags}", regs_of(voff), regs_of(dst))

    def bload_lds(self, voff, srd, soff, off=0, flags=""):
        o = f" offset:{off}" if off else ""
        self.ins("vml", f"buffer_load_dwordx4 {voff}, {srd}, {soff} offen{o}{flags} lds", regs_of(voff), [])

    def bstore(self, op, data, voff, srd, soff="0", off=0, flags=""):
        o = f" offset:{off}" if off else ""
        self.ins("vms", f"{op} {data}, {voff}, {srd}, {soff} offen{o}{flags}", regs_of(voff) + regs_of(data), [])

    def text(self):
        return "\n".join(self.lines) + "\n"
```

```python
from asmlib import Asm, R

LOG2E = 1.4426950408889634
SCALE = LOG2E / 16.0
THR = 8.0 / SCALE

import struct
def f32hex(x):
    return "0x%08x" % struct.unpack("<I", struct.pack("<f", x))[0]

NW_T = 14
NKV = 32

def tile_order():
    t = [("W", i) for i in range(NW_T)]
    t.append(("K", 0))
    for j in range(NKV):
        if j + 1 < NKV:
            t.append(("K", j + 1))
        t.append(("V", j))
    return t

def tile_slot(kind, idx):
    if kind == "W":
        ring = idx % 2
        return ring * 65536 + ((idx // 2) % 4) * 16384
    if kind == "V":
        return ((idx + 7) % 4) * 16384
    if kind == "K":
        return 65536 + ((idx + 7) % 4) * 16384

def gen_attn(a, name, NL=1, dbg=False):
    order = tile_order()
    NT = len(order)
    a.raw(f".globl {name}")
    a.raw(".p2align 8")
    a.raw(f".type {name},@function")
    a.label(name)
    a.s("s_cmp_ge_u32 s2, 256")
    a.s(f"s_cbranch_scc1 {name}_end")
    a.s("s_load_dwordx4 s[40:43], s[0:1], 0")
    a.s("s_load_dwordx4 s[44:47], s[0:1], 16")
    a.s("s_load_dwordx2 s[48:49], s[0:1], 56")
    a.v("v_lshrrev_b32", "v1", "6", "v0")
    a.ins("rfl", "v_readfirstlane_b32 s24, v1", ["v1"], [])
    a.s("s_and_b32 s27, s2, 7")
    a.s("s_lshr_b32 s29, s2, 3")
    a.s("s_and_b32 s26, s29, 1")
    a.s("s_lshr_b32 s28, s29, 1")
    a.s("s_lshl_b32 s25, s27, 4")
    a.s("s_add_u32 s25, s25, s28")
    a.s("s_waitcnt lgkmcnt(0)")
    def srd(d, lo, nbytes):
        a.s(f"s_mov_b32 s{d}, s{lo}")
        a.s(f"s_and_b32 s{d+1}, s{lo+1}, 0xffff")
        a.s(f"s_mov_b32 s{d+2}, {nbytes}")
        a.s(f"s_mov_b32 s{d+3}, 0x00020000")
    srd(4, 40, 8 * 192 * 448 * 2)
    srd(8, 42, 8 * 16 * 1024 * 256 * 2)
    srd(12, 44, 8 * 16 * 1024 * 256 * 2)
    srd(16, 46, 448 * 4096 * 2)
    srd(20, 48, 1536 * 4096 * 2)
    a.s("s_cmp_ge_u32 s24, 3")
    a.s(f"s_cbranch_scc1 {name}_loader")

    ACC = 0
    S = [128, 144]
    P = 160
    KF = 168
    VF = 184
    AK = 200
    AV = 208
    AVH = 212
    MREF, MC, MTHR, LSUM = 216, 217, 218, 219
    T0, T1, T2, T3 = 220, 221, 222, 223
    XOFF, OOFF = 224, 225
    VL, VQ, VH = 226, 227, 228
    QA = 0
    XA = 64
    a.s(f"s_mov_b32 s30, {f32hex(SCALE)}")
    a.s(f"s_mov_b32 s31, {f32hex(THR)}")
    a.v("v_and_b32", f"v{VL}", "63", "v0")
    a.v("v_and_b32", f"v{VQ}", "31", "v0")
    a.v("v_bfe_u32", f"v{VH}", "v0", "5", "1")
    a.s("s_mul_i32 s32, s27, 192")
    a.s("s_mul_i32 s33, s26, 96")
    a.s("s_add_u32 s32, s32, s33")
    a.s("s_lshl_b32 s33, s24, 5")
    a.s("s_add_u32 s32, s32, s33")
    a.v("v_add_u32", f"v{T0}", "s32", f"v{VQ}")
    a.v("v_mul_u32_u24", f"v{XOFF}", "896", f"v{T0}")
    a.v("v_lshlrev_b32", f"v{T1}", "4", f"v{VH}")
    a.v("v_add_u32", f"v{XOFF}", f"v{XOFF}", f"v{T1}")
    for ks in range(28):
        a.bload("buffer_load_dwordx4", f"a[{XA+4*ks}:{XA+4*ks+3}]", f"v{XOFF}", "s[4:7]", "0", ks * 32)
    a.v("v_lshlrev_b32", f"v{OOFF}", "13", f"v{T0}")
    a.v("v_add_u32", f"v{OOFF}", f"v{OOFF}", f"v{T1}")
    a.s("s_lshl_b32 s33, s28, 9")
    a.v("v_add_u32", f"v{OOFF}", "s33", f"v{OOFF}")
    a.v("v_and_b32", f"v{T0}", "19", f"v{VQ}")
    a.v("v_lshrrev_b32", f"v{T1}", "1", f"v{VQ}")
    a.v("v_and_b32", f"v{T1}", "4", f"v{T1}")
    a.v("v_or_b32", f"v{T0}", f"v{T0}", f"v{T1}")
    a.v("v_lshlrev_b32", f"v{T1}", "1", f"v{VQ}")
    a.v("v_and_b32", f"v{T1}", "8", f"v{T1}")
    a.v("v_or_b32", f"v{T0}", f"v{T0}", f"v{T1}")
    a.v("v_and_b32", f"v{T1}", "15", f"v{T0}")
    a.v("v_xor_b32", f"v{T1}", f"v{T1}", f"v{VH}")
    a.v("v_lshlrev_b32", f"v{T0}", "9", f"v{T0}")
    a.v("v_add_u32", f"v{T0}", "0x10000", f"v{T0}")
    for e in range(8):
        a.v("v_xor_b32", f"v{T2}", f"{2*e}", f"v{T1}")
        a.v("v_lshl_add_u32", f"v{AK+e}", f"v{T2}", "4", f"v{T0}")
    a.v("v_bfe_u32", f"v{T0}", f"v{VL}", "2", "2")
    a.v("v_and_b32", f"v{T1}", "1", f"v{VL}")
    a.v("v_bfe_u32", f"v{T2}", f"v{VL}", "1", "1")
    a.v("v_bfe_u32", f"v{T3}", f"v{VL}", "4", "1")
    a.v("v_lshl_add_u32", f"v{T1}", f"v{T3}", "1", f"v{T1}")
    a.v("v_lshlrev_b32", f"v{T1}", "4", f"v{T1}")
    a.v("v_lshl_add_u32", f"v{T1}", f"v{T2}", "3", f"v{T1}")
    a.v("v_lshl_add_u32", f"v{T2}", f"v{VH}", "3", f"v{T0}")
    a.v("v_lshl_add_u32", f"v{T1}", f"v{T2}", "9", f"v{T1}")
    for e in range(4):
        a.v("v_xor_b32", f"v{T2}", f"{e}", f"v{T0}")
        a.v("v_lshl_add_u32", f"v{AV+e}", f"v{T2}", "6", f"v{T1}")
        a.v("v_add_u32", f"v{AVH+e}", "0x10000", f"v{AV+e}")
    a.v("v_mov_b32", f"v{MREF}", "0xff800000")
    a.v("v_mov_b32", f"v{MTHR}", "0xff800000")
    a.v("v_mov_b32", f"v{MC}", "0")
    a.v("v_mov_b32", f"v{LSUM}", "0")

    def acc(dt):
        return f"v[{ACC+16*dt}:{ACC+16*dt+15}]"

    def vread(base, idx):
        dt, kk = idx // 2, idx % 2
        hi = base >= 65536
        ar = (AVH if hi else AV) + (dt & 3)
        off = (base & 0xffff) + kk * 8192 + (dt >> 2) * 256
        vf = VF + 4 * (idx % 4)
        a.ds_read("ds_read_b64_tr_b16", f"v[{vf}:{vf+1}]", f"v{ar}", off)
        a.ds_read("ds_read_b64_tr_b16", f"v[{vf+2}:{vf+3}]", f"v{ar}", off + 2048)

    def kread(base, ds):
        off = (base & 0xffff) + (ds >> 3) * 256
        kf = KF + 4 * (ds % 4)
        a.ds_read("ds_read_b128", f"v[{kf}:{kf+3}]", f"v{AK + (ds & 7)}", off)

    PF = 3

    def first_reads(t):
        kind, idx = order[t]
        base = tile_slot(kind, idx)
        if kind == "K":
            return [lambda ds=ds: kread(base, ds) for ds in range(PF)]
        return [lambda i=i: vread(base, i) for i in range(PF)]

    def step(t, fillers=(), bop=None, first_c0=False, sb=0):
        kind, idx = order[t]
        base = tile_slot(kind, idx)
        nxt = first_reads(t + 1) if t + 1 < NT else []
        fillers = list(fillers)
        nf = len(fillers)
        done = 0
        for i in range(16):
            if i + PF < 16:
                (kread if kind == "K" else vread)(base, i + PF)
            elif nxt:
                nxt[i + PF - 16]()
            if kind == "K":
                kf = KF + 4 * (i % 4)
                sreg = f"v[{S[sb]}:{S[sb]+15}]"
                a.mfma32(sreg, f"v[{kf}:{kf+3}]", f"a[{QA+4*i}:{QA+4*i+3}]", "0" if i == 0 else sreg)
            else:
                vf = VF + 4 * (i % 4)
                dt, kk = i // 2, i % 2
                c = "0" if (first_c0 and kk == 0) else acc(dt)
                a.mfma32(acc(dt), f"v[{vf}:{vf+3}]", bop(i), c)
            want = (nf * (i + 1) + 15) // 16
            while done < want:
                fillers[done]()
                done += 1

    nbar = [0]
    def barrier():
        a.s("s_barrier")
        nbar[0] += 1

    barrier()
    for f in first_reads(0):
        f()
    for t in range(NW_T):
        barrier()
        step(t, bop=lambda i, t=t: f"a[{XA+4*(2*t + i % 2)}:{XA+4*(2*t + i % 2)+3}]", first_c0=(t == 0))
    for dt in range(8):
        for hf in range(2):
            ds = 2 * dt + hf
            for r in range(4):
                src = ACC + 16 * dt + 8 * hf + 2 * r
                a.v("v_cvt_pk_bf16_f32", f"v{T0 + (r & 1)}", f"v{src}", f"v{src+1}")
                a.v("v_accvgpr_write_b32", f"a{QA + 4*ds + r}", f"v{T0 + (r & 1)}")
    for i in range(128):
        a.v("v_mov_b32", f"v{ACC+i}", "0")

    cnt = [0]
    def softmax_ops(sb):
        Sr = S[sb]
        ops = []
        def mx():
            a.v("v_max3_f32", f"v{T0}", f"v{Sr}", f"v{Sr+1}", f"v{Sr+2}")
        ops.append(mx)
        for i in range(3, 15, 2):
            ops.append(lambda i=i: a.v("v_max3_f32", f"v{T0}", f"v{T0}", f"v{Sr+i}", f"v{Sr+i+1}"))
        ops.append(lambda: a.v("v_max_f32", f"v{T0}", f"v{T0}", f"v{Sr+15}"))
        def red():
            a.v("v_mov_b32", f"v{T1}", f"v{T0}")
            a.permswap32(f"v{T0}", f"v{T1}")
            a.v("v_max_f32", f"v{T0}", f"v{T0}", f"v{T1}")
            a.vcmp("v_cmp_gt_f32", "vcc", f"v{T0}", f"v{MTHR}")
            lab = f"{name}_skip{cnt[0]}"
            cnt[0] += 1
            a.s("s_nop 1")
            a.s(f"s_cbranch_vccz {lab}")
            snap = a.snapshot()
            a.v("v_max_f32", f"v{T1}", f"v{MREF}", f"v{T0}")
            a.v("v_sub_f32", f"v{T2}", f"v{MREF}", f"v{T1}")
            a.v("v_mul_f32", f"v{T2}", "s30", f"v{T2}")
            a.trans("v_exp_f32", f"v{T2}", f"v{T2}")
            a.v("v_mov_b32", f"v{MREF}", f"v{T1}")
            a.v("v_mul_f32", f"v{MC}", "s30", f"v{T1}")
            a.v("v_add_f32", f"v{MTHR}", "s31", f"v{T1}")
            a.v("v_mul_f32", f"v{LSUM}", f"v{LSUM}", f"v{T2}")
            for i in range(128):
                a.v("v_mul_f32", f"v{ACC+i}", f"v{ACC+i}", f"v{T2}")
            a.flush()
            a.label(lab)
            a.restore(snap)
        ops.append(red)
        for i in range(16):
            ops.append(lambda i=i: a.v("v_fma_f32", f"v{Sr+i}", f"v{Sr+i}", "s30", f"-v{MC}"))
            ops.append(lambda i=i: a.trans("v_exp_f32", f"v{Sr+i}", f"v{Sr+i}"))
        for i in range(0, 16, 2):
            ops.append(lambda i=i: a.v("v_add_f32", f"v{T3}", f"v{Sr+i}", f"v{Sr+i+1}"))
            ops.append(lambda i=i: a.v("v_add_f32", f"v{LSUM}", f"v{LSUM}", f"v{T3}"))
            ops.append(lambda i=i: a.v("v_cvt_pk_bf16_f32", f"v{P + i//2}", f"v{Sr+i}", f"v{Sr+i+1}"))
        return ops

    pb = lambda i: f"v[{P + 4*(i % 2)}:{P + 4*(i % 2) + 3}]"

    t = NW_T
    barrier()
    step(t, sb=0)
    t += 1
    def iteration(j, t):
        if j + 1 < NKV:
            barrier()
            step(t, fillers=softmax_ops(j % 2), sb=(j + 1) % 2)
            t += 1
        else:
            for f in softmax_ops(j % 2):
                f()
        if t + 1 < NT:
            barrier()
        step(t, bop=pb)
        return t + 1

    a.s("s_mov_b32 s34, 0")
    a.flush()
    lq0 = [set(x) for x in a.lds_q]
    a.label(f"{name}_loop")
    tt = t
    for j in range(4):
        tt = iteration(j, tt)
    a.flush()
    assert [set(x) for x in a.lds_q] == lq0, (a.lds_q, lq0)
    a.s("s_add_u32 s34, s34, 1")
    a.s("s_cmp_lt_u32 s34, 7")
    a.s(f"s_cbranch_scc1 {name}_loop")
    nbar[0] += 6 * 8
    t = NW_T + 1 + 2 * 28
    for j in range(28, 32):
        t = iteration(j, t)
    assert t == NT
    assert nbar[0] == NT, (nbar[0], NT)

    a.v("v_mov_b32", f"v{T1}", f"v{LSUM}")
    a.permswap32(f"v{LSUM}", f"v{T1}")
    a.v("v_add_f32", f"v{LSUM}", f"v{LSUM}", f"v{T1}")
    a.trans("v_rcp_f32", f"v{T2}", f"v{LSUM}")
    for dt in range(8):
        for hf in range(2):
            base = ACC + 16 * dt + 8 * hf
            dst = S[(2 * dt + hf) % 2]
            for r in range(4):
                a.v("v_mul_f32", f"v{base+2*r}", f"v{base+2*r}", f"v{T2}")
                a.v("v_mul_f32", f"v{base+2*r+1}", f"v{base+2*r+1}", f"v{T2}")
                a.v("v_cvt_pk_bf16_f32", f"v{dst+r}", f"v{base+2*r}", f"v{base+2*r+1}")
            a.bstore("buffer_store_dwordx4", f"v[{dst}:{dst+3}]", f"v{OOFF}", "s[20:23]", "0", dt * 64 + hf * 32)
    a.s("s_endpgm")

    a.label(f"{name}_loader")
    b = Asm()
    b.v("v_and_b32", "v1", "63", "v0")
    b.v("v_lshrrev_b32", "v2", "5", "v1")
    b.v("v_and_b32", "v3", "31", "v1")
    for e in range(8):
        b.v("v_add_u32", "v4", f"{2*e}", "v2")
        b.v("v_and_b32", "v4", "15", "v4")
        b.v("v_xor_b32", "v4", "v4", "v3")
        b.v("v_lshlrev_b32", "v4", "4", "v4")
        b.v("v_lshl_add_u32", f"v{16+e}", "v2", "9", "v4")
    for e in range(2):
        b.v("v_add_u32", "v4", f"{2*e}", "v2")
        b.v("v_and_b32", "v4", "3", "v4")
        b.v("v_lshlrev_b32", "v4", "2", "v4")
        b.v("v_xor_b32", "v4", "v4", "v3")
        b.v("v_lshlrev_b32", "v4", "4", "v4")
        b.v("v_lshl_add_u32", f"v{24+e}", "v2", "9", "v4")
        b.v("v_lshl_add_u32", f"v{26+e}", "v2", "13", "v4")
    b.s("s_lshl_b32 s35, s25, 19")
    b.s("s_lshl_b32 s36, s28, 9")
    if NL == 2:
        b.s("s_sub_u32 s37, s24, 3")

    per_tile = 16 // NL

    def emit_loader(b, ld):
        outstanding = []
        def issue(tn):
            kind, idx = order[tn]
            base = tile_slot(kind, idx)
            for n in range(16):
                if n % NL != ld:
                    continue
                b.s(f"s_mov_b32 m0, {base + n * 1024}")
                if kind == "W":
                    b.s(f"s_add_u32 s38, s36, {(32 * idx + 2 * n) * 8192}")
                    b.bload_lds(f"v{26 + n % 2}", "s[16:19]", "s38")
                else:
                    b.s(f"s_add_u32 s38, s35, {idx * 16384 + n * 1024}")
                    if kind == "K":
                        b.bload_lds(f"v{16 + n % 8}", "s[8:11]", "s38")
                    else:
                        b.bload_lds(f"v{24 + n % 2}", "s[12:15]", "s38")
                outstanding.append(tn)
        last_in_slot = {}
        pred = []
        for tn, (kind, idx) in enumerate(order):
            sl = tile_slot(kind, idx)
            pred.append(last_in_slot.get(sl, -1))
            last_in_slot[sl] = tn
        nxt = 0
        maxout = 63 - per_tile
        def try_issue(i):
            nonlocal nxt
            while nxt < NT and (pred[nxt] < 0 or pred[nxt] <= i - 2) and len(outstanding) <= maxout:
                issue(nxt)
                nxt += 1
        try_issue(-1)
        for i in range(NT):
            assert nxt > i, "tile not issued before its barrier"
            n_after = len([x for x in outstanding if x > i])
            b.s(f"s_waitcnt vmcnt({n_after})")
            outstanding[:] = [x for x in outstanding if x > i]
            b.s("s_barrier")
            try_issue(i)
        b.s("s_endpgm")

    if NL == 1:
        emit_loader(b, 0)
    else:
        b.s("s_cmp_eq_u32 s37, 1")
        b.s(f"s_cbranch_scc1 {name}_loader1")
        emit_loader(b, 0)
        b.label(f"{name}_loader1")
        emit_loader(b, 1)
    a.lines += b.lines
    a.label(f"{name}_end")
    a.s("s_endpgm")

def kd(name, vgpr=256, agpr=176, sgpr=64):
    return f""".section .rodata,"a"
.p2align 6
.amdhsa_kernel {name}
  .amdhsa_next_free_vgpr {vgpr + agpr}
  .amdhsa_next_free_sgpr {sgpr}
  .amdhsa_accum_offset {vgpr}
  .amdhsa_group_segment_fixed_size 0
  .amdhsa_kernarg_size 64
  .amdhsa_user_sgpr_count 2
  .amdhsa_user_sgpr_kernarg_segment_ptr 1
  .amdhsa_system_sgpr_workgroup_id_x 1
.end_amdhsa_kernel
.text
"""
```

```python
from asmlib import Asm

NCH = 32
NST = 4

def gen_oproj(a, name, NL=2):
    a.raw(f".globl {name}")
    a.raw(".p2align 8")
    a.raw(f".type {name},@function")
    a.label(name)
    a.s("s_cmp_ge_u32 s2, 168")
    a.s(f"s_cbranch_scc1 {name}_end")
    a.s("s_load_dwordx2 s[40:41], s[0:1], 32")
    a.s("s_load_dwordx2 s[42:43], s[0:1], 40")
    a.s("s_load_dwordx2 s[44:45], s[0:1], 56")
    a.v("v_lshrrev_b32", "v1", "6", "v0")
    a.ins("rfl", "v_readfirstlane_b32 s24, v1", ["v1"], [])
    a.s("s_and_b32 s25, s2, 7")
    a.s("s_lshr_b32 s26, s2, 3")
    a.s("s_mul_i32 s27, s26, 37")
    a.s("s_lshr_b32 s27, s27, 8")
    a.s("s_mul_i32 s28, s27, 7")
    a.s("s_sub_u32 s28, s26, s28")
    a.s("s_mul_i32 s25, s25, 3")
    a.s("s_add_u32 s27, s27, s25")
    a.s("s_waitcnt lgkmcnt(0)")
    def srd(d, lo, nbytes):
        a.s(f"s_mov_b32 s{d}, s{lo}")
        a.s(f"s_and_b32 s{d+1}, s{lo+1}, 0xffff")
        a.s(f"s_mov_b32 s{d+2}, {nbytes}")
        a.s(f"s_mov_b32 s{d+3}, 0x00020000")
    srd(4, 40, 4096 * 448 * 2)
    srd(8, 42, 1536 * 448 * 2)
    srd(12, 44, 1536 * 4096 * 2)
    a.s("s_cmp_ge_u32 s24, 4")
    a.s(f"s_cbranch_scc1 {name}_loader")

    ACC = 0
    BF = 64
    AF = 80
    AO = 96
    AW = 98
    T0, T1, T2, T3, VL, VH = 100, 101, 102, 103, 104, 105
    OOFF = 106
    RED = 107
    a.v("v_and_b32", f"v{VL}", "63", "v0")
    a.v("v_bfe_u32", f"v{VH}", "v0", "5", "1")
    a.v("v_and_b32", f"v{T0}", "31", "v0")
    a.v("v_and_b32", f"v{T1}", "15", "v0")
    a.v("v_xor_b32", f"v{T1}", f"v{T1}", f"v{VH}")
    a.s("s_lshl_b32 s29, s24, 1")
    a.v("v_xor_b32", f"v{T1}", "s29", f"v{T1}")
    a.v("v_lshlrev_b32", f"v{T2}", "8", f"v{T0}")
    a.v("v_lshl_add_u32", f"v{AO}", f"v{T1}", "4", f"v{T2}")
    a.v("v_xor_b32", f"v{T1}", "8", f"v{T1}")
    a.v("v_lshl_add_u32", f"v{AO+1}", f"v{T1}", "4", f"v{T2}")
    a.s("s_lshl_b32 s30, s27, 6")
    a.s("s_lshr_b32 s31, s24, 1")
    a.s("s_lshl_b32 s31, s31, 5")
    a.s("s_add_u32 s30, s30, s31")
    a.v("v_add_u32", f"v{T0}", "s30", f"v{T0}")
    a.v("v_mul_u32_u24", f"v{OOFF}", "896", f"v{T0}")
    a.s("s_lshl_b32 s30, s28, 7")
    a.s("s_and_b32 s31, s24, 1")
    a.s("s_lshl_b32 s31, s31, 6")
    a.s("s_add_u32 s30, s30, s31")
    a.v("v_add_u32", f"v{OOFF}", "s30", f"v{OOFF}")
    a.v("v_lshl_add_u32", f"v{OOFF}", f"v{VH}", "4", f"v{OOFF}")
    a.v("v_bfe_u32", f"v{T0}", f"v{VL}", "2", "2")
    a.v("v_and_b32", f"v{T1}", "1", f"v{VL}")
    a.v("v_bfe_u32", f"v{T2}", f"v{VL}", "1", "1")
    a.v("v_bfe_u32", f"v{T3}", f"v{VL}", "4", "1")
    a.v("v_lshl_add_u32", f"v{T1}", f"v{T3}", "1", f"v{T1}")
    a.v("v_bfe_u32", f"v{T3}", f"v{VL}", "3", "1")
    a.v("v_lshl_add_u32", f"v{T1}", f"v{T3}", "2", f"v{T1}")
    a.v("v_lshlrev_b32", f"v{T1}", "4", f"v{T1}")
    a.v("v_lshl_add_u32", f"v{T1}", f"v{T2}", "3", f"v{T1}")
    a.v("v_lshl_add_u32", f"v{T2}", f"v{VH}", "3", f"v{T0}")
    a.v("v_lshl_add_u32", f"v{T1}", f"v{T2}", "7", f"v{T1}")
    a.s("s_lshl_b32 s29, s24, 11")
    a.s("s_add_u32 s29, s29, 0x10000")
    a.v("v_add_u32", f"v{AW}", "s29", f"v{T1}")
    a.v("v_xor_b32", f"v{AW+1}", "64", f"v{AW}")
    a.v("v_lshlrev_b32", f"v{RED}", "4", f"v{VL}")

    def acc(mt, nt):
        b0 = ACC + 16 * (2 * mt + nt)
        return f"v[{b0}:{b0+15}]"

    def reads(ch, half):
        st = (ch % NST) * 16384
        ops = []
        for mt in range(2):
            d = BF + 8 * half + 4 * mt
            ops.append(lambda d=d, mt=mt: a.ds_read("ds_read_b128", f"v[{d}:{d+3}]", f"v{AO+half}", st + mt * 8192))
        for nt in range(2):
            d = AF + 8 * half + 4 * nt
            off = st + half * 8192
            ops.append(lambda d=d, nt=nt, off=off: a.ds_read("ds_read_b64_tr_b16", f"v[{d}:{d+1}]", f"v{AW+nt}", off))
            ops.append(lambda d=d, nt=nt, off=off: a.ds_read("ds_read_b64_tr_b16", f"v[{d+2}:{d+3}]", f"v{AW+nt}", off + 512))
        return ops

    def mfmas(half, first):
        for mt in range(2):
            for nt in range(2):
                af = AF + 8 * half + 4 * nt
                bf = BF + 8 * half + 4 * mt
                a.mfma32(acc(mt, nt), f"v[{af}:{af+3}]", f"v[{bf}:{bf+3}]", "0" if first else acc(mt, nt))

    nbar = [0]
    def barrier():
        a.s("s_barrier"); nbar[0] += 1

    def step(ch, first=False):
        if ch + 1 < NCH:
            barrier()
        for f in reads(ch, 1):
            f()
        mfmas(0, first)
        if ch + 1 < NCH:
            for f in reads(ch + 1, 0):
                f()
        mfmas(1, False)

    barrier()
    for f in reads(0, 0):
        f()
    for ch in range(4):
        step(ch, first=(ch == 0))
    a.s("s_mov_b32 s34, 0")
    a.flush()
    lq0 = [set(x) for x in a.lds_q]
    a.label(f"{name}_loop")
    for ch in range(4, 8):
        step(ch)
    a.flush()
    assert [set(x) for x in a.lds_q] == lq0
    a.s("s_add_u32 s34, s34, 1")
    a.s("s_cmp_lt_u32 s34, 6")
    a.s(f"s_cbranch_scc1 {name}_loop")
    nbar[0] += 5 * 4
    for ch in range(28, 32):
        step(ch)
    assert nbar[0] == NCH, nbar[0]
    a.flush()
    barrier()
    for tl in range(4):
        lab = f"{name}_nw{tl}"
        a.s(f"s_cmp_eq_u32 s24, {tl}")
        a.s(f"s_cbranch_scc1 {lab}")
        a.s(f"s_lshl_b32 s29, s24, 12")
        a.v("v_add_u32", f"v{T0}", "s29", f"v{RED}")
        for i4 in range(4):
            b0 = ACC + 16 * tl + 4 * i4
            a.ds_write("ds_write_b128", f"v{T0}", f"v[{b0}:{b0+3}]", tl * 16384 + i4 * 1024)
        a.label(lab)
    a.wait_lgkm(0)
    barrier()
    for tl in range(4):
        lab = f"{name}_no{tl}"
        a.s(f"s_cmp_lg_u32 s24, {tl}")
        a.s(f"s_cbranch_scc1 {lab}")
        for i in range(16):
            a.v("v_mov_b32", f"v{64+i}", f"v{ACC+16*tl+i}")
        a.label(lab)
    a.s("s_lshl_b32 s29, s24, 14")
    a.v("v_add_u32", f"v{T0}", "s29", f"v{RED}")
    for w in range(4):
        lab = f"{name}_nr{w}"
        a.s(f"s_cmp_eq_u32 s24, {w}")
        a.s(f"s_cbranch_scc1 {lab}")
        for i4 in range(4):
            a.ds_read("ds_read_b128", f"v[{80+4*i4}:{83+4*i4}]", f"v{T0}", w * 4096 + i4 * 1024)
        a.wait_lgkm(0)
        for i in range(16):
            a.v("v_add_f32", f"v{64+i}", f"v{64+i}", f"v{80+i}")
        a.label(lab)
    for hf in range(2):
        for r in range(4):
            a.v("v_cvt_pk_bf16_f32", f"v{80+4*hf+r}", f"v{64+8*hf+2*r}", f"v{64+8*hf+2*r+1}")
        a.bstore("buffer_store_dwordx4", f"v[{80+4*hf}:{83+4*hf}]", f"v{OOFF}", "s[8:11]", "0", hf * 32)
    a.s("s_endpgm")

    a.label(f"{name}_loader")
    b = Asm()
    b.v("v_and_b32", "v1", "63", "v0")
    b.v("v_lshrrev_b32", "v2", "4", "v1")
    b.v("v_and_b32", "v3", "15", "v1")
    for e in range(4):
        b.v("v_add_u32", "v4", f"{4*e}", "v2")
        b.v("v_xor_b32", "v4", "v4", "v3")
        b.v("v_lshlrev_b32", "v4", "4", "v4")
        b.v("v_lshl_add_u32", f"v{16+e}", "v2", "13", "v4")
    b.v("v_lshrrev_b32", "v2", "3", "v1")
    b.v("v_and_b32", "v3", "7", "v1")
    b.v("v_bfe_u32", "v4", "v1", "4", "1")
    b.v("v_lshlrev_b32", "v4", "2", "v4")
    b.v("v_xor_b32", "v4", "v4", "v3")
    b.v("v_lshlrev_b32", "v4", "4", "v4")
    b.v("v_mul_u32_u24", "v5", "896", "v2")
    b.v("v_add_u32", "v20", "v5", "v4")
    b.s("s_lshl_b32 s35, s27, 19")
    b.s("s_lshl_b32 s36, s28, 7")
    b.s("s_sub_u32 s37, s24, 4")

    per = 32 // NL
    def emit_loader(ld):
        outstanding = []
        def issue(ch):
            st = (ch % NST) * 16384
            for n in range(32):
                if n % NL != ld:
                    continue
                b.s(f"s_mov_b32 m0, {st + (n % 16) * 1024 + (n // 16) * 65536}")
                if n < 16:
                    b.s(f"s_add_u32 s38, s35, {4 * n * 8192 + ch * 256}")
                    b.bload_lds(f"v{16 + n % 4}", "s[12:15]", "s38")
                else:
                    nn = n - 16
                    b.s(f"s_add_u32 s38, s36, {(ch * 128 + 8 * nn) * 896}")
                    b.bload_lds("v20", "s[4:7]", "s38")
                outstanding.append(ch)
        nxt = [0]
        def try_issue(i):
            while nxt[0] < NCH and (nxt[0] - NST <= i - 2) and len(outstanding) <= 63 - per:
                issue(nxt[0]); nxt[0] += 1
        try_issue(-1)
        for i in range(NCH):
            assert nxt[0] > i
            n_after = len([x for x in outstanding if x > i])
            b.s(f"s_waitcnt vmcnt({n_after})")
            outstanding[:] = [x for x in outstanding if x > i]
            b.s("s_barrier")
            try_issue(i)
        b.s("s_barrier")
        b.s("s_barrier")
        b.s("s_endpgm")
    for ld in range(NL):
        if ld + 1 < NL:
            b.s(f"s_cmp_lg_u32 s37, {ld}")
            b.s(f"s_cbranch_scc1 {name}_ld{ld+1}")
        emit_loader(ld)
        if ld + 1 < NL:
            b.label(f"{name}_ld{ld+1}")
    a.lines += b.lines
    a.label(f"{name}_end")
    a.s("s_endpgm")
```

```python
import sys
from asmlib import Asm
import attn, oproj
NL = 1
a = Asm()
hdr0 = open("standalone__mha_block_cached__near_ridge.s.ref").read().split("; Override launch")[0]
hdr = hdr0 + f"; @launch kernel=attn_kernel grid=(256,1,1) block=({64*(3+NL)},1,1) lds=131072\n"
hdr += f"; @launch kernel=oproj_kernel grid=(168,1,1) block=({64*6},1,1) lds=131072\n"
a.raw('.amdgcn_target "amdgcn-amd-amdhsa--gfx950"')
a.raw(".text")
attn.gen_attn(a, "attn_kernel", NL=NL)
a2 = Asm()
oproj.gen_oproj(a2, "oproj_kernel", NL=2)
out = sys.argv[1] if len(sys.argv) > 1 else "standalone__mha_block_cached__near_ridge.s"
open(out, "w").write(hdr + a.text() + attn.kd("attn_kernel") + a2.text() + attn.kd("oproj_kernel", vgpr=112, agpr=0))
print("written", out)
```

```python
from asmlib import Asm, R
import struct

LOG2E = 1.4426950408889634
SCALE = LOG2E / 16.0
THR = 8.0 / SCALE

def f32hex(x):
    return "0x%08x" % struct.unpack("<I", struct.pack("<f", x))[0]

NW_T = 14
NKV = 32
DMAX = 3

def tile_order():
    t = [("W", i) for i in range(NW_T)]
    t.append(("K", 0))
    for j in range(NKV):
        if j + 1 < NKV:
            t.append(("K", j + 1))
        t.append(("V", j))
    t += [("O", i) for i in range(16)]
    return t

_slots = {}
def _mk_slots():
    cnt = [0, 0]
    for kind, idx in tile_order():
        ring = {"W": idx % 2, "O": (idx + 1) % 2, "K": 1, "V": 0}[kind]
        _slots[(kind, idx)] = ring * 65536 + (cnt[ring] % 4) * 16384
        cnt[ring] += 1
_mk_slots()

def tile_slot(kind, idx):
    return _slots[(kind, idx)]

def nfrag(kind):
    return 14 if kind == "O" else 16

def schedule():
    order = tile_order()
    NT = len(order)
    last = {}
    pred = []
    for tn, (kind, idx) in enumerate(order):
        sl = tile_slot(kind, idx)
        pred.append(last.get(sl, -1))
        last[sl] = tn
    after = {i: [] for i in range(-1, NT)}
    nxt = 0
    for i in range(-1, NT):
        while nxt < NT and (pred[nxt] < 0 or pred[nxt] <= i - 2) and nxt <= max(i, 0) + DMAX:
            after[i].append(nxt)
            nxt += 1
        assert nxt > min(i + 1, NT - 1), "tile must be issued before its barrier"
    return after

def gen_attn(a, name, dbg=False, PF=6, SPLIT=36):
    order = tile_order()
    NT = len(order)
    after = schedule()
    a.raw(f".globl {name}")
    a.raw(".p2align 8")
    a.raw(f".type {name},@function")
    a.label(name)
    a.s("s_cmp_ge_u32 s2, 256")
    a.s(f"s_cbranch_scc1 {name}_end")
    a.s("s_load_dwordx4 s[40:43], s[0:1], 0")
    a.s("s_load_dwordx4 s[44:47], s[0:1], 16")
    a.s("s_load_dwordx2 s[48:49], s[0:1], 56")
    a.s("s_load_dwordx2 s[56:57], s[0:1], 32")
    a.v("v_lshrrev_b32", "v1", "6", "v0")
    a.ins("rfl", "v_readfirstlane_b32 s24, v1", ["v1"], [])
    a.s("s_and_b32 s27, s2, 7")
    a.s("s_lshr_b32 s29, s2, 3")
    a.s("s_and_b32 s26, s29, 1")
    a.s("s_lshr_b32 s28, s29, 1")
    a.s("s_lshl_b32 s25, s27, 4")
    a.s("s_add_u32 s25, s25, s28")
    a.s("s_waitcnt lgkmcnt(0)")
    def srd(d, lo, nbytes):
        a.s(f"s_mov_b32 s{d}, s{lo}")
        a.s(f"s_and_b32 s{d+1}, s{lo+1}, 0xffff")
        a.s(f"s_mov_b32 s{d+2}, {nbytes}")
        a.s(f"s_mov_b32 s{d+3}, 0x00020000")
    srd(4, 40, 8 * 192 * 448 * 2)
    srd(8, 42, 8 * 16 * 1024 * 256 * 2)
    srd(12, 44, 8 * 16 * 1024 * 256 * 2)
    srd(16, 46, 448 * 4096 * 2)
    srd(20, 48, 16 * 1536 * 448 * 2)
    srd(64, 56, 4096 * 448 * 2)
    if dbg:
        a.s("s_load_dwordx2 s[50:51], s[0:1], 48")
        a.s("s_waitcnt lgkmcnt(0)")
        srd(52, 50, 256)
        a.s("s_memtime s[70:71]")
    a.s("s_cmp_ge_u32 s24, 3")
    a.s(f"s_cbranch_scc1 {name}_loader")
    nst = [1]
    def stamp():
        if dbg:
            a.s(f"s_memtime s[{70+2*nst[0]}:{71+2*nst[0]}]")
            nst[0] += 1

    ACC = 0
    S = [128, 144]
    P = [160, 168]
    AK = 200
    AV = 208
    AVH = 212
    MREF, MC, MTHR, LSUM = 216, 217, 218, 219
    T0, T1, T2, T3 = 220, 221, 222, 223
    XOFF, OOFF = 224, 225
    VL, VQ, VH = 226, 227, 228
    ALPHA, TSUM = 229, 230
    QA = 0
    XA = 64
    FB = 176
    NFB = 8
    a.s(f"s_mov_b32 s30, {f32hex(SCALE)}")
    a.s(f"s_mov_b32 s31, {f32hex(THR)}")
    a.v("v_and_b32", f"v{VL}", "63", "v0")
    a.v("v_and_b32", f"v{VQ}", "31", "v0")
    a.v("v_bfe_u32", f"v{VH}", "v0", "5", "1")
    a.s("s_mul_i32 s32, s27, 192")
    a.s("s_mul_i32 s33, s26, 96")
    a.s("s_add_u32 s32, s32, s33")
    a.s("s_lshl_b32 s33, s24, 5")
    a.s("s_add_u32 s32, s32, s33")
    a.v("v_add_u32", f"v{T0}", "s32", f"v{VQ}")
    a.v("v_mul_u32_u24", f"v{XOFF}", "896", f"v{T0}")
    a.v("v_lshlrev_b32", f"v{T1}", "4", f"v{VH}")
    a.v("v_add_u32", f"v{XOFF}", f"v{XOFF}", f"v{T1}")
    for ks in range(28):
        a.bload("buffer_load_dwordx4", f"a[{XA+4*ks}:{XA+4*ks+3}]", f"v{XOFF}", "s[4:7]", "0", ks * 32)
    a.s("s_mul_i32 s33, s28, 1536*896")
    a.v("v_add_u32", f"v{OOFF}", "s33", f"v{XOFF}")
    a.v("v_and_b32", f"v{T0}", "19", f"v{VQ}")
    a.v("v_lshrrev_b32", f"v{T1}", "1", f"v{VQ}")
    a.v("v_and_b32", f"v{T1}", "4", f"v{T1}")
    a.v("v_or_b32", f"v{T0}", f"v{T0}", f"v{T1}")
    a.v("v_lshlrev_b32", f"v{T1}", "1", f"v{VQ}")
    a.v("v_and_b32", f"v{T1}", "8", f"v{T1}")
    a.v("v_or_b32", f"v{T0}", f"v{T0}", f"v{T1}")
    a.v("v_and_b32", f"v{T1}", "15", f"v{T0}")
    a.v("v_xor_b32", f"v{T1}", f"v{T1}", f"v{VH}")
    a.v("v_lshlrev_b32", f"v{T0}", "9", f"v{T0}")
    a.v("v_add_u32", f"v{T0}", "0x10000", f"v{T0}")
    for e in range(8):
        a.v("v_xor_b32", f"v{T2}", f"{2*e}", f"v{T1}")
        a.v("v_lshl_add_u32", f"v{AK+e}", f"v{T2}", "4", f"v{T0}")
    a.v("v_bfe_u32", f"v{T0}", f"v{VL}", "2", "2")
    a.v("v_and_b32", f"v{T1}", "1", f"v{VL}")
    a.v("v_bfe_u32", f"v{T2}", f"v{VL}", "1", "1")
    a.v("v_bfe_u32", f"v{T3}", f"v{VL}", "4", "1")
    a.v("v_lshl_add_u32", f"v{T1}", f"v{T3}", "1", f"v{T1}")
    a.v("v_lshlrev_b32", f"v{T1}", "4", f"v{T1}")
    a.v("v_lshl_add_u32", f"v{T1}", f"v{T2}", "3", f"v{T1}")
    a.v("v_lshl_add_u32", f"v{T2}", f"v{VH}", "3", f"v{T0}")
    a.v("v_lshl_add_u32", f"v{T1}", f"v{T2}", "9", f"v{T1}")
    for e in range(4):
        a.v("v_xor_b32", f"v{T2}", f"{e}", f"v{T0}")
        a.v("v_lshl_add_u32", f"v{AV+e}", f"v{T2}", "6", f"v{T1}")
        a.v("v_add_u32", f"v{AVH+e}", "0x10000", f"v{AV+e}")
    a.v("v_mov_b32", f"v{MREF}", "0xff800000")
    a.v("v_mov_b32", f"v{MTHR}", "0xff800000")
    a.v("v_mov_b32", f"v{MC}", "0")
    a.v("v_mov_b32", f"v{LSUM}", "0")

    def acc(dt):
        return f"v[{ACC+16*dt}:{ACC+16*dt+15}]"

    pref = [0]
    for kind_, _ in order:
        pref.append(pref[-1] + nfrag(kind_))
    def fbuf(t, i):
        g = (pref[t] + i) % NFB
        return FB + 4 * g

    def fread(t, i):
        kind, idx = order[t]
        base = tile_slot(kind, idx)
        fb = fbuf(t, i)
        if kind == "K":
            off = (base & 0xffff) + (i >> 3) * 256
            a.ds_read("ds_read_b128", f"a[{fb}:{fb+3}]", f"v{AK + (i & 7)}", off)
        else:
            dt, kk = i // 2, i % 2
            ar = (AVH if base >= 65536 else AV) + (dt & 3)
            off = (base & 0xffff) + kk * 8192 + (dt >> 2) * 256
            a.ds_read("ds_read_b64_tr_b16", f"a[{fb}:{fb+1}]", f"v{ar}", off)
            a.ds_read("ds_read_b64_tr_b16", f"a[{fb+2}:{fb+3}]", f"v{ar}", off + 2048)

    def step(t, fillers=(), bop=None, first_c0=False, sb=0):
        kind, idx = order[t]
        fillers = list(fillers)
        nf = len(fillers)
        done = 0
        NF = nfrag(kind)
        for i in range(NF):
            if i + PF < NF:
                fread(t, i + PF)
            elif t + 1 < NT:
                fread(t + 1, i + PF - NF)
            fb = fbuf(t, i)
            if kind == "K":
                sreg = f"v[{S[sb]}:{S[sb]+15}]"
                a.mfma32(sreg, f"a[{fb}:{fb+3}]", f"a[{QA+4*i}:{QA+4*i+3}]", "0" if i == 0 else sreg)
            else:
                dt, kk = i // 2, i % 2
                c = "0" if (first_c0 and kk == 0) else acc(dt)
                a.mfma32(acc(dt), f"a[{fb}:{fb+3}]", bop(i), c)
            want = (nf * (i + 1) + NF - 1) // NF
            while done < want:
                fillers[done]()
                done += 1

    nbar = [0]
    def barrier():
        a.s("s_barrier")
        nbar[0] += 1

    barrier()
    for i in range(PF):
        fread(0, i)
    for t in range(NW_T):
        barrier()
        step(t, bop=lambda i, t=t: f"a[{XA+4*(2*t + i % 2)}:{XA+4*(2*t + i % 2)+3}]", first_c0=(t == 0))
    stamp()
    for dt in range(8):
        for hf in range(2):
            ds = 2 * dt + hf
            for r in range(4):
                src = ACC + 16 * dt + 8 * hf + 2 * r
                a.v("v_cvt_pk_bf16_f32", f"v{T0 + (r & 1)}", f"v{src}", f"v{src+1}")
                a.v("v_accvgpr_write_b32", f"a{QA + 4*ds + r}", f"v{T0 + (r & 1)}")
    for i in range(128):
        a.v("v_mov_b32", f"v{ACC+i}", "0")

    cnt = [0]
    def softmax_ops(j):
        Sr = S[j % 2]
        Pr = P[j % 2]
        ops = []
        ops.append(lambda: a.v("v_max3_f32", f"v{T0}", f"v{Sr}", f"v{Sr+1}", f"v{Sr+2}"))
        for i in range(3, 15, 2):
            ops.append(lambda i=i: a.v("v_max3_f32", f"v{T0}", f"v{T0}", f"v{Sr+i}", f"v{Sr+i+1}"))
        ops.append(lambda: a.v("v_max_f32", f"v{T0}", f"v{T0}", f"v{Sr+15}"))
        def red():
            a.v("v_mov_b32", f"v{T1}", f"v{T0}")
            a.v("v_mov_b32", f"v{ALPHA}", "1.0")
            a.permswap32(f"v{T0}", f"v{T1}")
            a.v("v_max_f32", f"v{T0}", f"v{T0}", f"v{T1}")
            a.vcmp("v_cmp_gt_f32", "vcc", f"v{T0}", f"v{MTHR}")
            a.s("s_mov_b32 s46, 0")
            lab = f"{name}_skip{cnt[0]}"
            cnt[0] += 1
            a.s(f"s_cbranch_vccz {lab}")
            snap = a.snapshot()
            a.v("v_max_f32", f"v{T1}", f"v{MREF}", f"v{T0}")
            a.v("v_sub_f32", f"v{T2}", f"v{MREF}", f"v{T1}")
            a.v("v_mul_f32", f"v{T2}", "s30", f"v{T2}")
            a.trans("v_exp_f32", f"v{ALPHA}", f"v{T2}")
            a.v("v_mov_b32", f"v{MREF}", f"v{T1}")
            a.v("v_mul_f32", f"v{MC}", "s30", f"v{T1}")
            a.v("v_add_f32", f"v{MTHR}", "s31", f"v{T1}")
            a.s("s_mov_b32 s46, 1")
            a.flush()
            a.label(lab)
            a.restore(snap)
        ops.append(red)
        for i in range(16):
            ops.append(lambda i=i: a.v("v_fma_f32", f"v{Sr+i}", f"v{Sr+i}", "s30", f"-v{MC}"))
            ops.append(lambda i=i: a.trans("v_exp_f32", f"v{Sr+i}", f"v{Sr+i}"))
            if i % 2 == 1:
                if i == 1:
                    ops.append(lambda i=i: a.v("v_add_f32", f"v{TSUM}", f"v{Sr+i-1}", f"v{Sr+i}"))
                else:
                    ops.append(lambda i=i: a.v("v_add_f32", f"v{T3}", f"v{Sr+i-1}", f"v{Sr+i}"))
                    ops.append(lambda i=i: a.v("v_add_f32", f"v{TSUM}", f"v{TSUM}", f"v{T3}"))
                ops.append(lambda i=i: a.v("v_cvt_pk_bf16_f32", f"v{Pr + i//2}", f"v{Sr+i-1}", f"v{Sr+i}"))
        ops.append(lambda: a.v("v_fma_f32", f"v{LSUM}", f"v{LSUM}", f"v{ALPHA}", f"v{TSUM}"))
        return ops

    def rescale():
        lab = f"{name}_nors{cnt[0]}"
        cnt[0] += 1
        a.s("s_cmp_eq_u32 s46, 0")
        a.s(f"s_cbranch_scc1 {lab}")
        snap = a.snapshot()
        for i in range(128):
            a.v("v_mul_f32", f"v{ACC+i}", f"v{ACC+i}", f"v{ALPHA}")
        a.flush()
        a.label(lab)
        a.restore(snap)

    t = NW_T
    barrier()
    step(t, sb=0)
    t += 1
    pend = {}
    def iteration(j, t):
        rest = pend.pop(j, None)
        if rest is None:
            rest = softmax_ops(j)
        if j + 1 < NKV:
            barrier()
            step(t, fillers=rest, sb=(j + 1) % 2)
            t += 1
        else:
            for f in rest:
                f()
        if t + 1 < NT:
            barrier()
        rescale()
        pb = lambda i: f"v[{P[j % 2] + 4*(i % 2)}:{P[j % 2] + 4*(i % 2) + 3}]"
        if j + 1 < NKV:
            ops = softmax_ops(j + 1)
            pend[j + 1] = ops[SPLIT:]
            step(t, bop=pb, fillers=ops[:SPLIT])
        else:
            step(t, bop=pb)
        return t + 1

    stamp()
    for j in range(4):
        t = iteration(j, t)
    a.s("s_mov_b32 s34, 0")
    a.flush()
    lq0 = [set(x) for x in a.lds_q]
    a.label(f"{name}_loop")
    tt = t
    for j in range(4, 8):
        tt = iteration(j, tt)
    a.flush()
    assert [set(x) for x in a.lds_q] == lq0, (a.lds_q, lq0)
    a.s("s_add_u32 s34, s34, 1")
    a.s("s_cmp_lt_u32 s34, 6")
    a.s(f"s_cbranch_scc1 {name}_loop")
    nbar[0] += 5 * 8
    t = NW_T + 1 + 2 * 28
    pend[28] = pend.pop(8)
    for j in range(28, 32):
        t = iteration(j, t)
    stamp()
    a.v("v_mov_b32", f"v{T1}", f"v{LSUM}")
    a.permswap32(f"v{LSUM}", f"v{T1}")
    a.v("v_add_f32", f"v{LSUM}", f"v{LSUM}", f"v{T1}")
    a.trans("v_rcp_f32", f"v{T2}", f"v{LSUM}")
    for dt in range(8):
        for hf in range(2):
            ds = 2 * dt + hf
            for r in range(4):
                src = ACC + 16 * dt + 8 * hf + 2 * r
                a.v("v_mul_f32", f"v{src}", f"v{src}", f"v{T2}")
                a.v("v_mul_f32", f"v{src+1}", f"v{src+1}", f"v{T2}")
                a.v("v_cvt_pk_bf16_f32", f"v{T0 + (r & 1)}", f"v{src}", f"v{src+1}")
                a.v("v_accvgpr_write_b32", f"a{QA + 4*ds + r}", f"v{T0 + (r & 1)}")
    for p_ in range(2):
        for tt_ in range(8):
            if t + 1 < NT:
                barrier()
            step(t, bop=lambda i, tt_=tt_: f"a[{QA+4*(2*tt_ + i % 2)}:{QA+4*(2*tt_ + i % 2)+3}]", first_c0=(tt_ == 0))
            t += 1
        for nt_ in range(7):
            for hf in range(2):
                base = ACC + 16 * nt_ + 8 * hf
                dst = S[0] + 4 * ((2 * nt_ + hf) % 8)
                for r in range(4):
                    a.v("v_cvt_pk_bf16_f32", f"v{dst+r}", f"v{base+2*r}", f"v{base+2*r+1}")
                a.bstore("buffer_store_dwordx4", f"v[{dst}:{dst+3}]", f"v{OOFF}", "s[20:23]", "0", p_ * 448 + nt_ * 64 + hf * 32)
    assert t == NT
    assert nbar[0] == NT, (nbar[0], NT)
    if dbg:
        a.s("s_waitcnt vmcnt(0)")
        stamp()
        a.s("s_waitcnt lgkmcnt(0)")
        a.s("s_cmp_lg_u32 s2, 0")
        a.s(f"s_cbranch_scc1 {name}_nodbg")
        a.s("s_cmp_lg_u32 s24, 0")
        a.s(f"s_cbranch_scc1 {name}_nodbg")
        a.v("v_mov_b32", "v1", "0")
        for i in range(1, nst[0]):
            a.s(f"s_sub_u32 s{70+2*i}, s{70+2*i}, s70")
            a.v("v_mov_b32", "v2", f"s{70+2*i}")
            a.bstore("buffer_store_dword", "v2", "v1", "s[52:55]", "0", 4 * i)
        a.label(f"{name}_nodbg")
    a.s("s_endpgm")

    a.label(f"{name}_loader")
    b = Asm()
    b.v("v_and_b32", "v1", "63", "v0")
    b.v("v_lshrrev_b32", "v2", "5", "v1")
    b.v("v_and_b32", "v3", "31", "v1")
    for e in range(8):
        b.v("v_add_u32", "v4", f"{2*e}", "v2")
        b.v("v_and_b32", "v4", "15", "v4")
        b.v("v_xor_b32", "v4", "v4", "v3")
        b.v("v_lshlrev_b32", "v4", "4", "v4")
        b.v("v_lshl_add_u32", f"v{16+e}", "v2", "9", "v4")
    for e in range(2):
        b.v("v_add_u32", "v4", f"{2*e}", "v2")
        b.v("v_and_b32", "v4", "3", "v4")
        b.v("v_lshlrev_b32", "v4", "2", "v4")
        b.v("v_xor_b32", "v4", "v4", "v3")
        b.v("v_lshlrev_b32", "v4", "4", "v4")
        b.v("v_lshl_add_u32", f"v{24+e}", "v2", "9", "v4")
        b.v("v_lshl_add_u32", f"v{26+e}", "v2", "13", "v4")
        b.v("v_mul_u32_u24", "v5", "896", "v2")
        b.v("v_add_u32", f"v{28+e}", "v5", "v4")
    b.s("s_lshl_b32 s35, s25, 19")
    b.s("s_lshl_b32 s36, s28, 9")
    b.s("s_mul_i32 s37, s28, 256*896")
    outstanding = []
    def issue(tn):
        kind, idx = order[tn]
        base = tile_slot(kind, idx)
        for n in range(16):
            b.s(f"s_mov_b32 m0, {base + n * 1024}")
            if kind == "W":
                b.s(f"s_add_u32 s38, s36, {(32 * idx + 2 * n) * 8192}")
                b.bload_lds(f"v{26 + n % 2}", "s[16:19]", "s38")
            elif kind == "O":
                b.s(f"s_add_u32 s38, s37, {(32 * (idx % 8) + 2 * n) * 896 + (idx // 8) * 448}")
                b.bload_lds(f"v{28 + n % 2}", "s[64:67]", "s38")
            else:
                b.s(f"s_add_u32 s38, s35, {idx * 16384 + n * 1024}")
                if kind == "K":
                    b.bload_lds(f"v{16 + n % 8}", "s[8:11]", "s38", flags=" nt")
                else:
                    b.bload_lds(f"v{24 + n % 2}", "s[12:15]", "s38", flags=" nt")
            outstanding.append(tn)
    for tn in after[-1]:
        issue(tn)
    for i in range(NT):
        n_after = len([x for x in outstanding if x > i])
        assert n_after <= 63
        b.s(f"s_waitcnt vmcnt({n_after})")
        outstanding[:] = [x for x in outstanding if x > i]
        b.s("s_barrier")
        for tn in after[i]:
            issue(tn)
    b.s("s_endpgm")
    a.lines += b.lines
    a.label(f"{name}_end")
    a.s("s_endpgm")

def kd(name, vgpr=256, agpr=208, sgpr=96):
    return f""".section .rodata,"a"
.p2align 6
.amdhsa_kernel {name}
  .amdhsa_next_free_vgpr {vgpr + agpr}
  .amdhsa_next_free_sgpr {sgpr}
  .amdhsa_accum_offset {vgpr}
  .amdhsa_group_segment_fixed_size 0
  .amdhsa_kernarg_size 64
  .amdhsa_user_sgpr_count 2
  .amdhsa_user_sgpr_kernarg_segment_ptr 1
  .amdhsa_system_sgpr_workgroup_id_x 1
.end_amdhsa_kernel
.text
"""
```

```python
from asmlib import Asm
def gen_reduce(a, name):
    a.raw(f".globl {name}")
    a.raw(".p2align 8")
    a.raw(f".type {name},@function")
    a.label(name)
    a.s("s_cmp_ge_u32 s2, 336")
    a.s(f"s_cbranch_scc1 {name}_end")
    a.s("s_load_dwordx2 s[40:41], s[0:1], 40")
    a.s("s_load_dwordx2 s[42:43], s[0:1], 56")
    a.s("s_lshl_b32 s3, s2, 12")
    a.v("v_lshlrev_b32", "v1", "4", "v0")
    a.v("v_add_u32", "v1", "s3", "v1")
    a.s("s_waitcnt lgkmcnt(0)")
    def srd(d, lo, nbytes):
        a.s(f"s_mov_b32 s{d}, s{lo}")
        a.s(f"s_and_b32 s{d+1}, s{lo+1}, 0xffff")
        a.s(f"s_mov_b32 s{d+2}, {nbytes}")
        a.s(f"s_mov_b32 s{d+3}, 0x00020000")
    srd(4, 40, 1536 * 448 * 2)
    srd(8, 42, 16 * 1536 * 448 * 2)
    for h in range(16):
        a.s(f"s_mov_b32 s12, {h * 1536 * 896}")
        a.bload("buffer_load_dwordx4", f"v[{8+4*h}:{11+4*h}]", "v1", "s[8:11]", "s12")
    for h in range(16):
        for r in range(4):
            src = 8 + 4 * h + r
            if h == 0:
                a.v("v_lshlrev_b32", f"v{72+2*r}", "16", f"v{src}")
                a.v("v_and_b32", f"v{73+2*r}", "0xffff0000", f"v{src}")
            else:
                a.v("v_lshlrev_b32", "v2", "16", f"v{src}")
                a.v("v_and_b32", "v3", "0xffff0000", f"v{src}")
                a.v("v_add_f32", f"v{72+2*r}", f"v{72+2*r}", "v2")
                a.v("v_add_f32", f"v{73+2*r}", f"v{73+2*r}", "v3")
    for r in range(4):
        a.v("v_cvt_pk_bf16_f32", f"v{4+r}", f"v{72+2*r}", f"v{73+2*r}")
    a.bstore("buffer_store_dwordx4", "v[4:7]", "v1", "s[4:7]", "0")
    a.label(f"{name}_end")
    a.s("s_endpgm")
```

```python
import sys, os
from asmlib import Asm
import attn, reduce
DBG = int(os.environ.get('DBG', '0'))
PF = int(os.environ.get('PF', '6'))
SPLIT = int(os.environ.get('SPLIT', '36'))
a = Asm()
hdr0 = open("standalone__mha_block_cached__near_ridge.s.ref").read().split("; Override launch")[0]
hdr = hdr0 + f"; @launch kernel=attn_kernel grid=(256,1,1) block=(256,1,1) lds=131072\n"
hdr += f"; @launch kernel=reduce_kernel grid=(336,1,1) block=(256,1,1) lds=0\n"
a.raw('.amdgcn_target "amdgcn-amd-amdhsa--gfx950"')
a.raw(".text")
attn.gen_attn(a, "attn_kernel", dbg=DBG, PF=PF, SPLIT=SPLIT)
a2 = Asm()
reduce.gen_reduce(a2, "reduce_kernel", dbg=DBG)
out = sys.argv[1] if len(sys.argv) > 1 else "standalone__mha_block_cached__near_ridge.s"
open(out, "w").write(hdr + a.text() + attn.kd("attn_kernel") + a2.text() + attn.kd("reduce_kernel", vgpr=84, agpr=0, sgpr=48))
print("written", out, "nops", a.nnop)
```

```python
from asmlib import Asm, R
import struct

LOG2E = 1.4426950408889634
SCALE = LOG2E / 16.0
THR = 8.0 / SCALE

def f32hex(x):
    return "0x%08x" % struct.unpack("<I", struct.pack("<f", x))[0]

NW_T = 14
NKV = 32
DMAX = 3

def tile_order():
    t = [("W", i) for i in range(NW_T)]
    t.append(("K", 0))
    for j in range(NKV):
        if j + 1 < NKV:
            t.append(("K", j + 1))
        t.append(("V", j))
    t += [("O", i) for i in range(16)]
    return t

_slots = {}
def _mk_slots():
    cnt = [0, 0]
    for kind, idx in tile_order():
        ring = {"W": idx % 2, "O": (idx + 1) % 2, "K": 1, "V": 0}[kind]
        _slots[(kind, idx)] = ring * 65536 + (cnt[ring] % 4) * 16384
        cnt[ring] += 1
_mk_slots()

def tile_slot(kind, idx):
    return _slots[(kind, idx)]

def nfrag(kind):
    return 14 if kind == "O" else 16

def schedule():
    order = tile_order()
    NT = len(order)
    last = {}
    pred = []
    for tn, (kind, idx) in enumerate(order):
        sl = tile_slot(kind, idx)
        pred.append(last.get(sl, -1))
        last[sl] = tn
    after = {i: [] for i in range(-1, NT)}
    nxt = 0
    for i in range(-1, NT):
        while nxt < NT and (pred[nxt] < 0 or pred[nxt] <= i - 2) and nxt <= max(i, 0) + DMAX:
            after[i].append(nxt)
            nxt += 1
        assert nxt > min(i + 1, NT - 1), "tile must be issued before its barrier"
    return after

def gen_attn(a, name, dbg=False, PF=6, SPLIT=36):
    order = tile_order()
    NT = len(order)
    after = schedule()
    a.raw(f".globl {name}")
    a.raw(".p2align 8")
    a.raw(f".type {name},@function")
    a.label(name)
    a.s("s_cmp_ge_u32 s2, 256")
    a.s(f"s_cbranch_scc1 {name}_end")
    a.s("s_load_dwordx4 s[40:43], s[0:1], 0")
    a.s("s_load_dwordx4 s[44:47], s[0:1], 16")
    a.s("s_load_dwordx2 s[48:49], s[0:1], 56")
    a.s("s_load_dwordx2 s[56:57], s[0:1], 32")
    a.v("v_lshrrev_b32", "v1", "6", "v0")
    a.ins("rfl", "v_readfirstlane_b32 s24, v1", ["v1"], [])
    a.s("s_and_b32 s28, s2, 7")
    a.s("s_lshr_b32 s29, s2, 3")
    a.s("s_and_b32 s26, s29, 1")
    a.s("s_lshr_b32 s27, s29, 2")
    a.s("s_lshl_b32 s28, s28, 1")
    a.s("s_bfe_u32 s29, s29, 0x10001")
    a.s("s_add_u32 s28, s28, s29")
    a.s("s_lshl_b32 s25, s27, 4")
    a.s("s_add_u32 s25, s25, s28")
    a.s("s_waitcnt lgkmcnt(0)")
    def srd(d, lo, nbytes):
        a.s(f"s_mov_b32 s{d}, s{lo}")
        a.s(f"s_and_b32 s{d+1}, s{lo+1}, 0xffff")
        a.s(f"s_mov_b32 s{d+2}, {nbytes}")
        a.s(f"s_mov_b32 s{d+3}, 0x00020000")
    srd(4, 40, 8 * 192 * 448 * 2)
    srd(8, 42, 8 * 16 * 1024 * 256 * 2)
    srd(12, 44, 8 * 16 * 1024 * 256 * 2)
    srd(16, 46, 448 * 4096 * 2)
    srd(20, 48, 16 * 1536 * 448 * 2)
    srd(64, 56, 4096 * 448 * 2)
    if dbg:
        a.s("s_load_dwordx2 s[50:51], s[0:1], 48")
        a.s("s_waitcnt lgkmcnt(0)")
        srd(52, 50, 256)
        a.s("s_memtime s[70:71]")
    a.s("s_cmp_ge_u32 s24, 3")
    a.s(f"s_cbranch_scc1 {name}_loader")
    nst = [1]
    def stamp():
        if dbg:
            a.s(f"s_memtime s[{70+2*nst[0]}:{71+2*nst[0]}]")
            nst[0] += 1

    ACC = 0
    S = [128, 144]
    P = [160, 168]
    AK = 200
    AV = 208
    AVH = 212
    MREF, MC, MTHR, LSUM = 216, 217, 218, 219
    T0, T1, T2, T3 = 220, 221, 222, 223
    XOFF, OOFF = 224, 225
    VL, VQ, VH = 226, 227, 228
    ALPHA, TSUM = 229, 230
    QA = 0
    XA = 64
    FB = 176
    NFB = 8
    a.s(f"s_mov_b32 s30, {f32hex(SCALE)}")
    a.s(f"s_mov_b32 s31, {f32hex(THR)}")
    a.v("v_and_b32", f"v{VL}", "63", "v0")
    a.v("v_and_b32", f"v{VQ}", "31", "v0")
    a.v("v_bfe_u32", f"v{VH}", "v0", "5", "1")
    a.s("s_mul_i32 s32, s27, 192")
    a.s("s_mul_i32 s33, s26, 96")
    a.s("s_add_u32 s32, s32, s33")
    a.s("s_lshl_b32 s33, s24, 5")
    a.s("s_add_u32 s32, s32, s33")
    a.v("v_add_u32", f"v{T0}", "s32", f"v{VQ}")
    a.v("v_mul_u32_u24", f"v{XOFF}", "896", f"v{T0}")
    a.v("v_lshlrev_b32", f"v{T1}", "4", f"v{VH}")
    a.v("v_add_u32", f"v{XOFF}", f"v{XOFF}", f"v{T1}")
    for ks in range(28):
        a.bload("buffer_load_dwordx4", f"a[{XA+4*ks}:{XA+4*ks+3}]", f"v{XOFF}", "s[4:7]", "0", ks * 32)
    a.s("s_mul_i32 s33, s28, 1536*896")
    a.v("v_add_u32", f"v{OOFF}", "s33", f"v{XOFF}")
    a.v("v_and_b32", f"v{T0}", "19", f"v{VQ}")
    a.v("v_lshrrev_b32", f"v{T1}", "1", f"v{VQ}")
    a.v("v_and_b32", f"v{T1}", "4", f"v{T1}")
    a.v("v_or_b32", f"v{T0}", f"v{T0}", f"v{T1}")
    a.v("v_lshlrev_b32", f"v{T1}", "1", f"v{VQ}")
    a.v("v_and_b32", f"v{T1}", "8", f"v{T1}")
    a.v("v_or_b32", f"v{T0}", f"v{T0}", f"v{T1}")
    a.v("v_and_b32", f"v{T1}", "15", f"v{T0}")
    a.v("v_xor_b32", f"v{T1}", f"v{T1}", f"v{VH}")
    a.v("v_lshlrev_b32", f"v{T0}", "9", f"v{T0}")
    a.v("v_add_u32", f"v{T0}", "0x10000", f"v{T0}")
    for e in range(8):
        a.v("v_xor_b32", f"v{T2}", f"{2*e}", f"v{T1}")
        a.v("v_lshl_add_u32", f"v{AK+e}", f"v{T2}", "4", f"v{T0}")
    a.v("v_bfe_u32", f"v{T0}", f"v{VL}", "2", "2")
    a.v("v_and_b32", f"v{T1}", "1", f"v{VL}")
    a.v("v_bfe_u32", f"v{T2}", f"v{VL}", "1", "1")
    a.v("v_bfe_u32", f"v{T3}", f"v{VL}", "4", "1")
    a.v("v_lshl_add_u32", f"v{T1}", f"v{T3}", "1", f"v{T1}")
    a.v("v_lshlrev_b32", f"v{T1}", "4", f"v{T1}")
    a.v("v_lshl_add_u32", f"v{T1}", f"v{T2}", "3", f"v{T1}")
    a.v("v_lshl_add_u32", f"v{T2}", f"v{VH}", "3", f"v{T0}")
    a.v("v_lshl_add_u32", f"v{T1}", f"v{T2}", "9", f"v{T1}")
    for e in range(4):
        a.v("v_xor_b32", f"v{T2}", f"{e}", f"v{T0}")
        a.v("v_lshl_add_u32", f"v{AV+e}", f"v{T2}", "6", f"v{T1}")
        a.v("v_add_u32", f"v{AVH+e}", "0x10000", f"v{AV+e}")
    a.v("v_mov_b32", f"v{MREF}", "0xff800000")
    a.v("v_mov_b32", f"v{MTHR}", "0xff800000")
    a.v("v_mov_b32", f"v{MC}", "0")
    a.v("v_mov_b32", f"v{LSUM}", "0")

    def acc(dt):
        return f"v[{ACC+16*dt}:{ACC+16*dt+15}]"

    pref = [0]
    for kind_, _ in order:
        pref.append(pref[-1] + nfrag(kind_))
    def fbuf(t, i):
        g = (pref[t] + i) % NFB
        return FB + 4 * g

    def fread(t, i):
        kind, idx = order[t]
        base = tile_slot(kind, idx)
        fb = fbuf(t, i)
        if kind == "K":
            off = (base & 0xffff) + (i >> 3) * 256
            a.ds_read("ds_read_b128", f"a[{fb}:{fb+3}]", f"v{AK + (i & 7)}", off)
        else:
            dt, kk = i // 2, i % 2
            ar = (AVH if base >= 65536 else AV) + (dt & 3)
            off = (base & 0xffff) + kk * 8192 + (dt >> 2) * 256
            a.ds_read("ds_read_b64_tr_b16", f"a[{fb}:{fb+1}]", f"v{ar}", off)
            a.ds_read("ds_read_b64_tr_b16", f"a[{fb+2}:{fb+3}]", f"v{ar}", off + 2048)

    def step(t, fillers=(), bop=None, first_c0=False, sb=0):
        kind, idx = order[t]
        fillers = list(fillers)
        nf = len(fillers)
        done = 0
        NF = nfrag(kind)
        for i in range(NF):
            if i + PF < NF:
                fread(t, i + PF)
            elif t + 1 < NT:
                fread(t + 1, i + PF - NF)
            fb = fbuf(t, i)
            if kind == "K":
                sreg = f"v[{S[sb]}:{S[sb]+15}]"
                a.mfma32(sreg, f"a[{fb}:{fb+3}]", f"a[{QA+4*i}:{QA+4*i+3}]", "0" if i == 0 else sreg)
            else:
                dt, kk = i // 2, i % 2
                c = "0" if (first_c0 and kk == 0) else acc(dt)
                a.mfma32(acc(dt), f"a[{fb}:{fb+3}]", bop(i), c)
            want = (nf * (i + 1) + NF - 1) // NF
            while done < want:
                fillers[done]()
                done += 1

    nbar = [0]
    def barrier():
        a.s("s_barrier")
        nbar[0] += 1

    barrier()
    for i in range(PF):
        fread(0, i)
    for t in range(NW_T):
        barrier()
        step(t, bop=lambda i, t=t: f"a[{XA+4*(2*t + i % 2)}:{XA+4*(2*t + i % 2)+3}]", first_c0=(t == 0))
    stamp()
    for dt in range(8):
        for hf in range(2):
            ds = 2 * dt + hf
            for r in range(4):
                src = ACC + 16 * dt + 8 * hf + 2 * r
                a.v("v_cvt_pk_bf16_f32", f"v{T0 + (r & 1)}", f"v{src}", f"v{src+1}")
                a.v("v_accvgpr_write_b32", f"a{QA + 4*ds + r}", f"v{T0 + (r & 1)}")
    for i in range(128):
        a.v("v_mov_b32", f"v{ACC+i}", "0")

    cnt = [0]
    def softmax_ops(j):
        Sr = S[j % 2]
        Pr = P[j % 2]
        ops = []
        ops.append(lambda: a.v("v_max3_f32", f"v{T0}", f"v{Sr}", f"v{Sr+1}", f"v{Sr+2}"))
        ops.append(lambda: a.v("v_max3_f32", f"v{T1}", f"v{Sr+3}", f"v{Sr+4}", f"v{Sr+5}"))
        ops.append(lambda: a.v("v_max3_f32", f"v{T2}", f"v{Sr+6}", f"v{Sr+7}", f"v{Sr+8}"))
        ops.append(lambda: a.v("v_max3_f32", f"v{T0}", f"v{T0}", f"v{Sr+9}", f"v{Sr+10}"))
        ops.append(lambda: a.v("v_max3_f32", f"v{T1}", f"v{T1}", f"v{Sr+11}", f"v{Sr+12}"))
        ops.append(lambda: a.v("v_max3_f32", f"v{T2}", f"v{T2}", f"v{Sr+13}", f"v{Sr+14}"))
        ops.append(lambda: a.v("v_max_f32", f"v{T0}", f"v{T0}", f"v{Sr+15}"))
        ops.append(lambda: a.v("v_mov_b32", f"v{ALPHA}", "1.0"))
        ops.append(lambda: a.v("v_max3_f32", f"v{T0}", f"v{T0}", f"v{T1}", f"v{T2}"))
        def red():
            a.v("v_mov_b32", f"v{T1}", f"v{T0}")
            a.permswap32(f"v{T0}", f"v{T1}")
            a.v("v_max_f32", f"v{T0}", f"v{T0}", f"v{T1}")
            a.vcmp("v_cmp_gt_f32", "vcc", f"v{T0}", f"v{MTHR}")
            a.s("s_mov_b32 s46, 0")
            lab = f"{name}_skip{cnt[0]}"
            cnt[0] += 1
            a.s(f"s_cbranch_vccz {lab}")
            snap = a.snapshot()
            a.v("v_max_f32", f"v{T1}", f"v{MREF}", f"v{T0}")
            a.v("v_sub_f32", f"v{T2}", f"v{MREF}", f"v{T1}")
            a.v("v_mul_f32", f"v{T2}", "s30", f"v{T2}")
            a.trans("v_exp_f32", f"v{ALPHA}", f"v{T2}")
            a.v("v_mov_b32", f"v{MREF}", f"v{T1}")
            a.v("v_mul_f32", f"v{MC}", "s30", f"v{T1}")
            a.v("v_add_f32", f"v{MTHR}", "s31", f"v{T1}")
            a.s("s_mov_b32 s46, 1")
            a.flush()
            a.label(lab)
            a.restore(snap)
        ops.append(red)
        fma = lambda i: (lambda: a.v("v_fma_f32", f"v{Sr+i}", f"v{Sr+i}", "s30", f"-v{MC}"))
        ex = lambda i: (lambda: a.trans("v_exp_f32", f"v{Sr+i}", f"v{Sr+i}"))
        def pair(i):
            o = []
            if i == 1:
                o.append(lambda: a.v("v_add_f32", f"v{TSUM}", f"v{Sr+i-1}", f"v{Sr+i}"))
            else:
                tr = T3 if (i // 2) % 2 else T2
                o.append(lambda: a.v("v_add_f32", f"v{tr}", f"v{Sr+i-1}", f"v{Sr+i}"))
            o.append(lambda: a.v("v_cvt_pk_bf16_f32", f"v{Pr + i//2}", f"v{Sr+i-1}", f"v{Sr+i}"))
            if i > 1:
                tr = T3 if (i // 2) % 2 else T2
                o.append(lambda: a.v("v_add_f32", f"v{TSUM}", f"v{TSUM}", f"v{tr}"))
            return o
        ops += [fma(0), fma(1), fma(2)]
        late = []
        for i in range(16):
            ops.append(ex(i))
            if i + 3 < 16:
                ops.append(fma(i + 3))
            if late:
                ops.append(late.pop(0))
            if late and i % 2 == 0:
                ops.append(late.pop(0))
            if i % 2 == 1:
                late += pair(i)
        ops += late
        ops.append(lambda: a.v("v_fma_f32", f"v{LSUM}", f"v{LSUM}", f"v{ALPHA}", f"v{TSUM}"))
        return ops

    def rescale():
        lab = f"{name}_nors{cnt[0]}"
        cnt[0] += 1
        a.s("s_cmp_eq_u32 s46, 0")
        a.s(f"s_cbranch_scc1 {lab}")
        snap = a.snapshot()
        for i in range(128):
            a.v("v_mul_f32", f"v{ACC+i}", f"v{ACC+i}", f"v{ALPHA}")
        a.flush()
        a.label(lab)
        a.restore(snap)

    t = NW_T
    barrier()
    step(t, sb=0)
    t += 1
    pend = {}
    def iteration(j, t):
        rest = pend.pop(j, None)
        if rest is None:
            rest = softmax_ops(j)
        if j + 1 < NKV:
            barrier()
            step(t, fillers=rest, sb=(j + 1) % 2)
            t += 1
        else:
            for f in rest:
                f()
        if t + 1 < NT:
            barrier()
        rescale()
        pb = lambda i: f"v[{P[j % 2] + 4*(i % 2)}:{P[j % 2] + 4*(i % 2) + 3}]"
        if j + 1 < NKV:
            ops = softmax_ops(j + 1)
            pend[j + 1] = ops[SPLIT:]
            step(t, bop=pb, fillers=ops[:SPLIT])
        else:
            step(t, bop=pb)
        return t + 1

    stamp()
    for j in range(4):
        t = iteration(j, t)
    stamp()
    a.s("s_mov_b32 s34, 0")
    a.flush()
    lq0 = [set(x) for x in a.lds_q]
    a.label(f"{name}_loop")
    tt = t
    for j in range(4, 8):
        tt = iteration(j, tt)
    a.flush()
    assert [set(x) for x in a.lds_q] == lq0, (a.lds_q, lq0)
    a.s("s_add_u32 s34, s34, 1")
    a.s("s_cmp_lt_u32 s34, 6")
    a.s(f"s_cbranch_scc1 {name}_loop")
    nbar[0] += 5 * 8
    stamp()
    t = NW_T + 1 + 2 * 28
    pend[28] = pend.pop(8)
    for j in range(28, 32):
        t = iteration(j, t)
    stamp()
    a.v("v_mov_b32", f"v{T1}", f"v{LSUM}")
    a.permswap32(f"v{LSUM}", f"v{T1}")
    a.v("v_add_f32", f"v{LSUM}", f"v{LSUM}", f"v{T1}")
    a.trans("v_rcp_f32", f"v{T2}", f"v{LSUM}")
    for dt in range(8):
        for hf in range(2):
            ds = 2 * dt + hf
            for r in range(4):
                src = ACC + 16 * dt + 8 * hf + 2 * r
                a.v("v_mul_f32", f"v{src}", f"v{src}", f"v{T2}")
                a.v("v_mul_f32", f"v{src+1}", f"v{src+1}", f"v{T2}")
                a.v("v_cvt_pk_bf16_f32", f"v{T0 + (r & 1)}", f"v{src}", f"v{src+1}")
                a.v("v_accvgpr_write_b32", f"a{QA + 4*ds + r}", f"v{T0 + (r & 1)}")
    for p_ in range(2):
        for tt_ in range(8):
            if t + 1 < NT:
                barrier()
            step(t, bop=lambda i, tt_=tt_: f"a[{QA+4*(2*tt_ + i % 2)}:{QA+4*(2*tt_ + i % 2)+3}]", first_c0=(tt_ == 0))
            t += 1
        for nt_ in range(7):
            for hf in range(2):
                base = ACC + 16 * nt_ + 8 * hf
                dst = S[0] + 4 * ((2 * nt_ + hf) % 8)
                for r in range(4):
                    a.v("v_cvt_pk_bf16_f32", f"v{dst+r}", f"v{base+2*r}", f"v{base+2*r+1}")
                a.bstore("buffer_store_dwordx4", f"v[{dst}:{dst+3}]", f"v{OOFF}", "s[20:23]", "0", p_ * 448 + nt_ * 64 + hf * 32)
    assert t == NT
    assert nbar[0] == NT, (nbar[0], NT)
    if dbg:
        a.s("s_waitcnt vmcnt(0)")
        stamp()
        a.s("s_waitcnt lgkmcnt(0)")
        a.s("s_cmp_lg_u32 s2, 0")
        a.s(f"s_cbranch_scc1 {name}_nodbg")
        a.s("s_cmp_lg_u32 s24, 0")
        a.s(f"s_cbranch_scc1 {name}_nodbg")
        a.v("v_mov_b32", "v1", "0")
        for i in range(1, nst[0]):
            a.s(f"s_sub_u32 s{70+2*i}, s{70+2*i}, s70")
            a.v("v_mov_b32", "v2", f"s{70+2*i}")
            a.bstore("buffer_store_dword", "v2", "v1", "s[52:55]", "0", 4 * i)
        a.label(f"{name}_nodbg")
    a.s("s_endpgm")

    a.label(f"{name}_loader")
    b = Asm()
    b.v("v_and_b32", "v1", "63", "v0")
    b.v("v_lshrrev_b32", "v2", "5", "v1")
    b.v("v_and_b32", "v3", "31", "v1")
    for e in range(8):
        b.v("v_add_u32", "v4", f"{2*e}", "v2")
        b.v("v_and_b32", "v4", "15", "v4")
        b.v("v_xor_b32", "v4", "v4", "v3")
        b.v("v_lshlrev_b32", "v4", "4", "v4")
        b.v("v_lshl_add_u32", f"v{16+e}", "v2", "9", "v4")
    for e in range(2):
        b.v("v_add_u32", "v4", f"{2*e}", "v2")
        b.v("v_and_b32", "v4", "3", "v4")
        b.v("v_lshlrev_b32", "v4", "2", "v4")
        b.v("v_xor_b32", "v4", "v4", "v3")
        b.v("v_lshlrev_b32", "v4", "4", "v4")
        b.v("v_lshl_add_u32", f"v{24+e}", "v2", "9", "v4")
        b.v("v_lshl_add_u32", f"v{26+e}", "v2", "13", "v4")
        b.v("v_mul_u32_u24", "v5", "896", "v2")
        b.v("v_add_u32", f"v{28+e}", "v5", "v4")
    b.s("s_lshl_b32 s35, s25, 19")
    b.s("s_lshl_b32 s36, s28, 9")
    b.s("s_mul_i32 s37, s28, 256*896")
    outstanding = []
    def issue(tn):
        kind, idx = order[tn]
        base = tile_slot(kind, idx)
        for n in range(16):
            b.s(f"s_mov_b32 m0, {base + n * 1024}")
            if kind == "W":
                b.s(f"s_add_u32 s38, s36, {(32 * idx + 2 * n) * 8192}")
                b.bload_lds(f"v{26 + n % 2}", "s[16:19]", "s38")
            elif kind == "O":
                b.s(f"s_add_u32 s38, s37, {(32 * (idx % 8) + 2 * n) * 896 + (idx // 8) * 448}")
                b.bload_lds(f"v{28 + n % 2}", "s[64:67]", "s38")
            else:
                b.s(f"s_add_u32 s38, s35, {idx * 16384 + n * 1024}")
                if kind == "K":
                    b.bload_lds(f"v{16 + n % 8}", "s[8:11]", "s38", flags=" nt")
                else:
                    b.bload_lds(f"v{24 + n % 2}", "s[12:15]", "s38", flags=" nt")
            outstanding.append(tn)
    for tn in after[-1]:
        issue(tn)
    for i in range(NT):
        n_after = len([x for x in outstanding if x > i])
        assert n_after <= 63
        b.s(f"s_waitcnt vmcnt({n_after})")
        outstanding[:] = [x for x in outstanding if x > i]
        b.s("s_barrier")
        for tn in after[i]:
            issue(tn)
    b.s("s_endpgm")
    a.lines += b.lines
    a.label(f"{name}_end")
    a.s("s_endpgm")

def kd(name, vgpr=256, agpr=208, sgpr=96):
    return f""".section .rodata,"a"
.p2align 6
.amdhsa_kernel {name}
  .amdhsa_next_free_vgpr {vgpr + agpr}
  .amdhsa_next_free_sgpr {sgpr}
  .amdhsa_accum_offset {vgpr}
  .amdhsa_group_segment_fixed_size 0
  .amdhsa_kernarg_size 64
  .amdhsa_user_sgpr_count 2
  .amdhsa_user_sgpr_kernarg_segment_ptr 1
  .amdhsa_system_sgpr_workgroup_id_x 1
.end_amdhsa_kernel
.text
"""
```

```python
from asmlib import Asm, R
import struct

LOG2E = 1.4426950408889634
SCALE = LOG2E / 16.0
THR = 8.0 / SCALE

def f32hex(x):
    return "0x%08x" % struct.unpack("<I", struct.pack("<f", x))[0]

NW_T = 14
NKV = 32
DMAX = 3

def tile_order():
    t = [("W", i) for i in range(NW_T)]
    t.append(("K", 0))
    for j in range(NKV):
        if j + 1 < NKV:
            t.append(("K", j + 1))
        t.append(("V", j))
    t += [("O", i) for i in range(16)]
    return t

_slots = {}
def _mk_slots():
    cnt = [0, 0]
    for kind, idx in tile_order():
        ring = {"W": idx % 2, "O": (idx + 1) % 2, "K": 1, "V": 0}[kind]
        _slots[(kind, idx)] = ring * 65536 + (cnt[ring] % 4) * 16384
        cnt[ring] += 1
_mk_slots()

def tile_slot(kind, idx):
    return _slots[(kind, idx)]

def nfrag(kind):
    return 14 if kind == "O" else 16

def schedule():
    order = tile_order()
    NT = len(order)
    last = {}
    pred = []
    for tn, (kind, idx) in enumerate(order):
        sl = tile_slot(kind, idx)
        pred.append(last.get(sl, -1))
        last[sl] = tn
    after = {i: [] for i in range(-1, NT)}
    nxt = 0
    for i in range(-1, NT):
        while nxt < NT and (pred[nxt] < 0 or pred[nxt] <= i - 2) and nxt <= max(i, 0) + DMAX:
            after[i].append(nxt)
            nxt += 1
        assert nxt > min(i + 1, NT - 1), "tile must be issued before its barrier"
    return after

def gen_attn(a, name, dbg=False, PF=6, SPLIT=36):
    order = tile_order()
    NT = len(order)
    after = schedule()
    a.raw(f".globl {name}")
    a.raw(".p2align 8")
    a.raw(f".type {name},@function")
    a.label(name)
    a.s("s_cmp_ge_u32 s2, 256")
    a.s(f"s_cbranch_scc1 {name}_end")
    a.s("s_load_dwordx4 s[40:43], s[0:1], 0")
    a.s("s_load_dwordx4 s[44:47], s[0:1], 16")
    a.s("s_load_dwordx2 s[48:49], s[0:1], 56")
    a.s("s_load_dwordx2 s[56:57], s[0:1], 32")
    a.v("v_lshrrev_b32", "v1", "6", "v0")
    a.ins("rfl", "v_readfirstlane_b32 s24, v1", ["v1"], [])
    a.s("s_and_b32 s28, s2, 7")
    a.s("s_lshr_b32 s29, s2, 3")
    a.s("s_and_b32 s26, s29, 1")
    a.s("s_lshr_b32 s27, s29, 2")
    a.s("s_lshl_b32 s28, s28, 1")
    a.s("s_bfe_u32 s29, s29, 0x10001")
    a.s("s_add_u32 s28, s28, s29")
    a.s("s_lshl_b32 s25, s27, 4")
    a.s("s_add_u32 s25, s25, s28")
    a.s("s_waitcnt lgkmcnt(0)")
    def srd(d, lo, nbytes):
        a.s(f"s_mov_b32 s{d}, s{lo}")
        a.s(f"s_and_b32 s{d+1}, s{lo+1}, 0xffff")
        a.s(f"s_mov_b32 s{d+2}, {nbytes}")
        a.s(f"s_mov_b32 s{d+3}, 0x00020000")
    srd(4, 40, 8 * 192 * 448 * 2)
    srd(8, 42, 8 * 16 * 1024 * 256 * 2)
    srd(12, 44, 8 * 16 * 1024 * 256 * 2)
    srd(16, 46, 448 * 4096 * 2)
    srd(20, 48, 16 * 1536 * 448 * 2)
    srd(64, 56, 4096 * 448 * 2)
    if dbg:
        a.s("s_add_u32 s50, s48, 0x6000000")
        a.s("s_addc_u32 s51, s49, 0")
        srd(52, 50, 256)
        a.s("s_memtime s[70:71]")
        a.s("s_memrealtime s[90:91]")
    a.s("s_cmp_ge_u32 s24, 3")
    a.s(f"s_cbranch_scc1 {name}_loader")
    nst = [1]
    def stamp():
        if dbg:
            a.s(f"s_memtime s[{70+2*nst[0]}:{71+2*nst[0]}]")
            nst[0] += 1

    ACC = 0
    S = [128, 144]
    P = [160, 168]
    AK = 200
    AV = 208
    AVH = 212
    MREF, MC, MTHR, LSUM = 216, 217, 218, 219
    T0, T1, T2, T3 = 220, 221, 222, 223
    XOFF, OOFF = 224, 225
    VL, VQ, VH = 226, 227, 228
    ALPHA, TSUM = 229, 230
    QA = 0
    XA = 64
    FB = 176
    NFB = 8
    a.s(f"s_mov_b32 s30, {f32hex(SCALE)}")
    a.s(f"s_mov_b32 s31, {f32hex(THR)}")
    a.v("v_and_b32", f"v{VL}", "63", "v0")
    a.v("v_and_b32", f"v{VQ}", "31", "v0")
    a.v("v_bfe_u32", f"v{VH}", "v0", "5", "1")
    a.s("s_mul_i32 s32, s27, 192")
    a.s("s_mul_i32 s33, s26, 96")
    a.s("s_add_u32 s32, s32, s33")
    a.s("s_lshl_b32 s33, s24, 5")
    a.s("s_add_u32 s32, s32, s33")
    a.v("v_add_u32", f"v{T0}", "s32", f"v{VQ}")
    a.v("v_mul_u32_u24", f"v{XOFF}", "896", f"v{T0}")
    a.v("v_lshlrev_b32", f"v{T1}", "4", f"v{VH}")
    a.v("v_add_u32", f"v{XOFF}", f"v{XOFF}", f"v{T1}")
    for ks in range(28):
        a.bload("buffer_load_dwordx4", f"a[{XA+4*ks}:{XA+4*ks+3}]", f"v{XOFF}", "s[4:7]", "0", ks * 32)
    a.s("s_mul_i32 s33, s28, 1536*896")
    a.v("v_add_u32", f"v{OOFF}", "s33", f"v{XOFF}")
    a.v("v_and_b32", f"v{T0}", "19", f"v{VQ}")
    a.v("v_lshrrev_b32", f"v{T1}", "1", f"v{VQ}")
    a.v("v_and_b32", f"v{T1}", "4", f"v{T1}")
    a.v("v_or_b32", f"v{T0}", f"v{T0}", f"v{T1}")
    a.v("v_lshlrev_b32", f"v{T1}", "1", f"v{VQ}")
    a.v("v_and_b32", f"v{T1}", "8", f"v{T1}")
    a.v("v_or_b32", f"v{T0}", f"v{T0}", f"v{T1}")
    a.v("v_and_b32", f"v{T1}", "15", f"v{T0}")
    a.v("v_xor_b32", f"v{T1}", f"v{T1}", f"v{VH}")
    a.v("v_lshlrev_b32", f"v{T0}", "9", f"v{T0}")
    a.v("v_add_u32", f"v{T0}", "0x10000", f"v{T0}")
    for e in range(8):
        a.v("v_xor_b32", f"v{T2}", f"{2*e}", f"v{T1}")
        a.v("v_lshl_add_u32", f"v{AK+e}", f"v{T2}", "4", f"v{T0}")
    a.v("v_bfe_u32", f"v{T0}", f"v{VL}", "2", "2")
    a.v("v_and_b32", f"v{T1}", "1", f"v{VL}")
    a.v("v_bfe_u32", f"v{T2}", f"v{VL}", "1", "1")
    a.v("v_bfe_u32", f"v{T3}", f"v{VL}", "4", "1")
    a.v("v_lshl_add_u32", f"v{T1}", f"v{T3}", "1", f"v{T1}")
    a.v("v_lshlrev_b32", f"v{T1}", "4", f"v{T1}")
    a.v("v_lshl_add_u32", f"v{T1}", f"v{T2}", "3", f"v{T1}")
    a.v("v_lshl_add_u32", f"v{T2}", f"v{VH}", "3", f"v{T0}")
    a.v("v_lshl_add_u32", f"v{T1}", f"v{T2}", "9", f"v{T1}")
    for e in range(4):
        a.v("v_xor_b32", f"v{T2}", f"{e}", f"v{T0}")
        a.v("v_lshl_add_u32", f"v{AV+e}", f"v{T2}", "6", f"v{T1}")
        a.v("v_add_u32", f"v{AVH+e}", "0x10000", f"v{AV+e}")
    a.v("v_mov_b32", f"v{MREF}", "0xff800000")
    a.v("v_mov_b32", f"v{MTHR}", "0xff800000")
    a.v("v_mov_b32", f"v{MC}", "0")
    a.v("v_mov_b32", f"v{LSUM}", "0")

    def acc(dt):
        return f"v[{ACC+16*dt}:{ACC+16*dt+15}]"

    pref = [0]
    for kind_, _ in order:
        pref.append(pref[-1] + nfrag(kind_))
    def fbuf(t, i):
        g = (pref[t] + i) % NFB
        return FB + 4 * g

    def fread(t, i):
        kind, idx = order[t]
        base = tile_slot(kind, idx)
        fb = fbuf(t, i)
        if kind == "K":
            off = (base & 0xffff) + (i >> 3) * 256
            a.ds_read("ds_read_b128", f"a[{fb}:{fb+3}]", f"v{AK + (i & 7)}", off)
        else:
            dt, kk = i // 2, i % 2
            ar = (AVH if base >= 65536 else AV) + (dt & 3)
            off = (base & 0xffff) + kk * 8192 + (dt >> 2) * 256
            a.ds_read("ds_read_b64_tr_b16", f"a[{fb}:{fb+1}]", f"v{ar}", off)
            a.ds_read("ds_read_b64_tr_b16", f"a[{fb+2}:{fb+3}]", f"v{ar}", off + 2048)

    def step(t, fillers=(), bop=None, first_c0=False, sb=0):
        kind, idx = order[t]
        fillers = list(fillers)
        nf = len(fillers)
        done = 0
        NF = nfrag(kind)
        for i in range(NF):
            if i + PF < NF:
                fread(t, i + PF)
            elif t + 1 < NT:
                fread(t + 1, i + PF - NF)
            fb = fbuf(t, i)
            if kind == "K":
                sreg = f"v[{S[sb]}:{S[sb]+15}]"
                a.mfma32(sreg, f"a[{fb}:{fb+3}]", f"a[{QA+4*i}:{QA+4*i+3}]", "0" if i == 0 else sreg)
            else:
                dt, kk = i // 2, i % 2
                c = "0" if (first_c0 and kk == 0) else acc(dt)
                a.mfma32(acc(dt), f"a[{fb}:{fb+3}]", bop(i), c)
            want = (nf * (i + 1) + NF - 1) // NF
            while done < want:
                fillers[done]()
                done += 1

    nbar = [0]
    def barrier():
        a.s("s_barrier")
        nbar[0] += 1

    barrier()
    for i in range(PF):
        fread(0, i)
    for t in range(NW_T):
        barrier()
        step(t, bop=lambda i, t=t: f"a[{XA+4*(2*t + i % 2)}:{XA+4*(2*t + i % 2)+3}]", first_c0=(t == 0))
    stamp()
    for dt in range(8):
        for hf in range(2):
            ds = 2 * dt + hf
            for r in range(4):
                src = ACC + 16 * dt + 8 * hf + 2 * r
                a.v("v_cvt_pk_bf16_f32", f"v{T0 + (r & 1)}", f"v{src}", f"v{src+1}")
                a.v("v_accvgpr_write_b32", f"a{QA + 4*ds + r}", f"v{T0 + (r & 1)}")
    for i in range(128):
        a.v("v_mov_b32", f"v{ACC+i}", "0")

    cnt = [0]
    def softmax_ops(j):
        Sr = S[j % 2]
        Pr = P[j % 2]
        ops = []
        ops.append(lambda: a.v("v_max3_f32", f"v{T0}", f"v{Sr}", f"v{Sr+1}", f"v{Sr+2}"))
        ops.append(lambda: a.v("v_max3_f32", f"v{T1}", f"v{Sr+3}", f"v{Sr+4}", f"v{Sr+5}"))
        ops.append(lambda: a.v("v_max3_f32", f"v{T2}", f"v{Sr+6}", f"v{Sr+7}", f"v{Sr+8}"))
        ops.append(lambda: a.v("v_max3_f32", f"v{T0}", f"v{T0}", f"v{Sr+9}", f"v{Sr+10}"))
        ops.append(lambda: a.v("v_max3_f32", f"v{T1}", f"v{T1}", f"v{Sr+11}", f"v{Sr+12}"))
        ops.append(lambda: a.v("v_max3_f32", f"v{T2}", f"v{T2}", f"v{Sr+13}", f"v{Sr+14}"))
        ops.append(lambda: a.v("v_max_f32", f"v{T0}", f"v{T0}", f"v{Sr+15}"))
        ops.append(lambda: a.v("v_mov_b32", f"v{ALPHA}", "1.0"))
        ops.append(lambda: a.v("v_max3_f32", f"v{T0}", f"v{T0}", f"v{T1}", f"v{T2}"))
        def red():
            a.v("v_mov_b32", f"v{T1}", f"v{T0}")
            a.permswap32(f"v{T0}", f"v{T1}")
            a.v("v_max_f32", f"v{T0}", f"v{T0}", f"v{T1}")
            a.vcmp("v_cmp_gt_f32", "vcc", f"v{T0}", f"v{MTHR}")
            a.s("s_mov_b32 s46, 0")
            lab = f"{name}_skip{cnt[0]}"
            cnt[0] += 1
            a.s(f"s_cbranch_vccz {lab}")
            snap = a.snapshot()
            a.v("v_max_f32", f"v{T1}", f"v{MREF}", f"v{T0}")
            a.v("v_sub_f32", f"v{T2}", f"v{MREF}", f"v{T1}")
            a.v("v_mul_f32", f"v{T2}", "s30", f"v{T2}")
            a.trans("v_exp_f32", f"v{ALPHA}", f"v{T2}")
            a.v("v_mov_b32", f"v{MREF}", f"v{T1}")
            a.v("v_mul_f32", f"v{MC}", "s30", f"v{T1}")
            a.v("v_add_f32", f"v{MTHR}", "s31", f"v{T1}")
            a.s("s_mov_b32 s46, 1")
            a.flush()
            a.label(lab)
            a.restore(snap)
        ops.append(red)
        fma = lambda i: (lambda: a.v("v_fma_f32", f"v{Sr+i}", f"v{Sr+i}", "s30", f"-v{MC}"))
        ex = lambda i: (lambda: a.trans("v_exp_f32", f"v{Sr+i}", f"v{Sr+i}"))
        def pair(i):
            o = []
            if i == 1:
                o.append(lambda: a.v("v_add_f32", f"v{TSUM}", f"v{Sr+i-1}", f"v{Sr+i}"))
            else:
                tr = T3 if (i // 2) % 2 else T2
                o.append(lambda: a.v("v_add_f32", f"v{tr}", f"v{Sr+i-1}", f"v{Sr+i}"))
            o.append(lambda: a.v("v_cvt_pk_bf16_f32", f"v{Pr + i//2}", f"v{Sr+i-1}", f"v{Sr+i}"))
            if i > 1:
                tr = T3 if (i // 2) % 2 else T2
                o.append(lambda: a.v("v_add_f32", f"v{TSUM}", f"v{TSUM}", f"v{tr}"))
            return o
        ops += [fma(0), fma(1), fma(2)]
        late = []
        for i in range(16):
            ops.append(ex(i))
            if i + 3 < 16:
                ops.append(fma(i + 3))
            if late:
                ops.append(late.pop(0))
            if late and i % 2 == 0:
                ops.append(late.pop(0))
            if i % 2 == 1:
                late += pair(i)
        ops += late
        ops.append(lambda: a.v("v_fma_f32", f"v{LSUM}", f"v{LSUM}", f"v{ALPHA}", f"v{TSUM}"))
        return ops

    def rescale():
        lab = f"{name}_nors{cnt[0]}"
        cnt[0] += 1
        a.s("s_cmp_eq_u32 s46, 0")
        a.s(f"s_cbranch_scc1 {lab}")
        snap = a.snapshot()
        for i in range(128):
            a.v("v_mul_f32", f"v{ACC+i}", f"v{ACC+i}", f"v{ALPHA}")
        a.flush()
        a.label(lab)
        a.restore(snap)

    t = NW_T
    barrier()
    step(t, sb=0)
    t += 1
    pend = {}
    def iteration(j, t):
        rest = pend.pop(j, None)
        if rest is None:
            rest = softmax_ops(j)
        if j + 1 < NKV:
            barrier()
            step(t, fillers=rest, sb=(j + 1) % 2)
            t += 1
        else:
            for f in rest:
                f()
        if t + 1 < NT:
            barrier()
        rescale()
        pb = lambda i: f"v[{P[j % 2] + 4*(i % 2)}:{P[j % 2] + 4*(i % 2) + 3}]"
        if j + 1 < NKV:
            ops = softmax_ops(j + 1)
            pend[j + 1] = ops[SPLIT:]
            step(t, bop=pb, fillers=ops[:SPLIT])
        else:
            step(t, bop=pb)
        return t + 1

    stamp()
    for j in range(4):
        t = iteration(j, t)
    stamp()
    a.s("s_mov_b32 s34, 0")
    a.flush()
    lq0 = [set(x) for x in a.lds_q]
    a.label(f"{name}_loop")
    tt = t
    for j in range(4, 8):
        tt = iteration(j, tt)
    a.flush()
    assert [set(x) for x in a.lds_q] == lq0, (a.lds_q, lq0)
    a.s("s_add_u32 s34, s34, 1")
    a.s("s_cmp_lt_u32 s34, 6")
    a.s(f"s_cbranch_scc1 {name}_loop")
    nbar[0] += 5 * 8
    stamp()
    t = NW_T + 1 + 2 * 28
    pend[28] = pend.pop(8)
    for j in range(28, 32):
        t = iteration(j, t)
    stamp()
    a.v("v_mov_b32", f"v{T1}", f"v{LSUM}")
    a.permswap32(f"v{LSUM}", f"v{T1}")
    a.v("v_add_f32", f"v{LSUM}", f"v{LSUM}", f"v{T1}")
    a.trans("v_rcp_f32", f"v{T2}", f"v{LSUM}")
    for dt in range(8):
        for hf in range(2):
            ds = 2 * dt + hf
            for r in range(4):
                src = ACC + 16 * dt + 8 * hf + 2 * r
                a.v("v_mul_f32", f"v{src}", f"v{src}", f"v{T2}")
                a.v("v_mul_f32", f"v{src+1}", f"v{src+1}", f"v{T2}")
                a.v("v_cvt_pk_bf16_f32", f"v{T0 + (r & 1)}", f"v{src}", f"v{src+1}")
                a.v("v_accvgpr_write_b32", f"a{QA + 4*ds + r}", f"v{T0 + (r & 1)}")
    for p_ in range(2):
        for tt_ in range(8):
            if t + 1 < NT:
                barrier()
            step(t, bop=lambda i, tt_=tt_: f"a[{QA+4*(2*tt_ + i % 2)}:{QA+4*(2*tt_ + i % 2)+3}]", first_c0=(tt_ == 0))
            t += 1
        for nt_ in range(7):
            for hf in range(2):
                base = ACC + 16 * nt_ + 8 * hf
                dst = S[0] + 4 * ((2 * nt_ + hf) % 8)
                for r in range(4):
                    a.v("v_cvt_pk_bf16_f32", f"v{dst+r}", f"v{base+2*r}", f"v{base+2*r+1}")
                a.bstore("buffer_store_dwordx4", f"v[{dst}:{dst+3}]", f"v{OOFF}", "s[20:23]", "0", p_ * 448 + nt_ * 64 + hf * 32)
    assert t == NT
    assert nbar[0] == NT, (nbar[0], NT)
    if dbg:
        a.s("s_waitcnt vmcnt(0)")
        stamp()
        a.s("s_memrealtime s[92:93]")
        a.s("s_waitcnt lgkmcnt(0)")
        a.s("s_cmp_lg_u32 s2, 0")
        a.s(f"s_cbranch_scc1 {name}_nodbg")
        a.s("s_cmp_lg_u32 s24, 0")
        a.s(f"s_cbranch_scc1 {name}_nodbg")
        a.v("v_mov_b32", "v1", "0")
        for i in range(1, nst[0]):
            a.s(f"s_sub_u32 s{70+2*i}, s{70+2*i}, s70")
            a.v("v_mov_b32", "v2", f"s{70+2*i}")
            a.bstore("buffer_store_dword", "v2", "v1", "s[52:55]", "0", 4 * i)
        a.s("s_sub_u32 s92, s92, s90")
        a.v("v_mov_b32", "v2", "s92")
        a.bstore("buffer_store_dword", "v2", "v1", "s[52:55]", "0", 60)
        a.label(f"{name}_nodbg")
    a.s("s_endpgm")

    a.label(f"{name}_loader")
    b = Asm()
    b.v("v_and_b32", "v1", "63", "v0")
    b.v("v_lshrrev_b32", "v2", "5", "v1")
    b.v("v_and_b32", "v3", "31", "v1")
    for e in range(8):
        b.v("v_add_u32", "v4", f"{2*e}", "v2")
        b.v("v_and_b32", "v4", "15", "v4")
        b.v("v_xor_b32", "v4", "v4", "v3")
        b.v("v_lshlrev_b32", "v4", "4", "v4")
        b.v("v_lshl_add_u32", f"v{16+e}", "v2", "9", "v4")
    for e in range(2):
        b.v("v_add_u32", "v4", f"{2*e}", "v2")
        b.v("v_and_b32", "v4", "3", "v4")
        b.v("v_lshlrev_b32", "v4", "2", "v4")
        b.v("v_xor_b32", "v4", "v4", "v3")
        b.v("v_lshlrev_b32", "v4", "4", "v4")
        b.v("v_lshl_add_u32", f"v{24+e}", "v2", "9", "v4")
        b.v("v_lshl_add_u32", f"v{26+e}", "v2", "13", "v4")
        b.v("v_mul_u32_u24", "v5", "896", "v2")
        b.v("v_add_u32", f"v{28+e}", "v5", "v4")
    b.s("s_lshl_b32 s35, s25, 19")
    b.s("s_lshl_b32 s36, s28, 9")
    b.s("s_mul_i32 s37, s28, 256*896")
    outstanding = []
    def issue(tn):
        kind, idx = order[tn]
        base = tile_slot(kind, idx)
        for n in range(16):
            b.s(f"s_mov_b32 m0, {base + n * 1024}")
            if kind == "W":
                b.s(f"s_add_u32 s38, s36, {(32 * idx + 2 * n) * 8192}")
                b.bload_lds(f"v{26 + n % 2}", "s[16:19]", "s38")
            elif kind == "O":
                b.s(f"s_add_u32 s38, s37, {(32 * (idx % 8) + 2 * n) * 896 + (idx // 8) * 448}")
                b.bload_lds(f"v{28 + n % 2}", "s[64:67]", "s38")
            else:
                b.s(f"s_add_u32 s38, s35, {idx * 16384 + n * 1024}")
                if kind == "K":
                    b.bload_lds(f"v{16 + n % 8}", "s[8:11]", "s38", flags=" nt")
                else:
                    b.bload_lds(f"v{24 + n % 2}", "s[12:15]", "s38", flags=" nt")
            outstanding.append(tn)
    for tn in after[-1]:
        issue(tn)
    for i in range(NT):
        n_after = len([x for x in outstanding if x > i])
        assert n_after <= 63
        b.s(f"s_waitcnt vmcnt({n_after})")
        outstanding[:] = [x for x in outstanding if x > i]
        b.s("s_barrier")
        for tn in after[i]:
            issue(tn)
    b.s("s_endpgm")
    a.lines += b.lines
    a.label(f"{name}_end")
    a.s("s_endpgm")

def kd(name, vgpr=256, agpr=208, sgpr=96):
    return f""".section .rodata,"a"
.p2align 6
.amdhsa_kernel {name}
  .amdhsa_next_free_vgpr {vgpr + agpr}
  .amdhsa_next_free_sgpr {sgpr}
  .amdhsa_accum_offset {vgpr}
  .amdhsa_group_segment_fixed_size 0
  .amdhsa_kernarg_size 64
  .amdhsa_user_sgpr_count 2
  .amdhsa_user_sgpr_kernarg_segment_ptr 1
  .amdhsa_system_sgpr_workgroup_id_x 1
.end_amdhsa_kernel
.text
"""
```

```python
from asmlib import Asm
def gen_reduce(a, name, dbg=False):
    a.raw(f".globl {name}")
    a.raw(".p2align 8")
    a.raw(f".type {name},@function")
    a.label(name)
    a.s("s_cmp_ge_u32 s2, 336")
    a.s(f"s_cbranch_scc1 {name}_end")
    a.s("s_load_dwordx2 s[40:41], s[0:1], 40")
    a.s("s_load_dwordx2 s[42:43], s[0:1], 56")
    a.s("s_lshl_b32 s3, s2, 12")
    a.v("v_lshlrev_b32", "v1", "4", "v0")
    a.v("v_add_u32", "v1", "s3", "v1")
    a.s("s_waitcnt lgkmcnt(0)")
    def srd(d, lo, nbytes):
        a.s(f"s_mov_b32 s{d}, s{lo}")
        a.s(f"s_and_b32 s{d+1}, s{lo+1}, 0xffff")
        a.s(f"s_mov_b32 s{d+2}, {nbytes}")
        a.s(f"s_mov_b32 s{d+3}, 0x00020000")
    srd(4, 40, 1536 * 448 * 2)
    srd(8, 42, 16 * 1536 * 448 * 2)
    for h in range(16):
        a.s(f"s_mov_b32 s12, {h * 1536 * 896}")
        a.bload("buffer_load_dwordx4", f"v[{8+4*h}:{11+4*h}]", "v1", "s[8:11]", "s12")
    for h in range(16):
        for r in range(4):
            src = 8 + 4 * h + r
            if h == 0:
                a.v("v_lshlrev_b32", f"v{72+2*r}", "16", f"v{src}")
                a.v("v_and_b32", f"v{73+2*r}", "0xffff0000", f"v{src}")
            else:
                a.v("v_lshlrev_b32", "v2", "16", f"v{src}")
                a.v("v_and_b32", "v3", "0xffff0000", f"v{src}")
                a.v("v_add_f32", f"v{72+2*r}", f"v{72+2*r}", "v2")
                a.v("v_add_f32", f"v{73+2*r}", f"v{73+2*r}", "v3")
    for r in range(4):
        a.v("v_cvt_pk_bf16_f32", f"v{4+r}", f"v{72+2*r}", f"v{73+2*r}")
    a.bstore("buffer_store_dwordx4", "v[4:7]", "v1", "s[4:7]", "0")
    if dbg:
        a.s("s_cmp_lg_u32 s2, 0")
        a.s(f"s_cbranch_scc1 {name}_end")
        a.s("s_load_dwordx2 s[44:45], s[0:1], 48")
        a.s("s_add_u32 s42, s42, 0x6000000")
        a.s("s_addc_u32 s43, s43, 0")
        a.s("s_waitcnt lgkmcnt(0)")
        srd(16, 42, 256)
        srd(20, 44, 256)
        a.v("v_lshlrev_b32", "v2", "2", "v0")
        a.bload("buffer_load_dword", "v3", "v2", "s[16:19]", "0")
        a.bstore("buffer_store_dword", "v3", "v2", "s[20:23]", "0")
    a.label(f"{name}_end")
    a.s("s_endpgm")
```

```python
from asmlib import Asm, R
import struct

LOG2E = 1.4426950408889634
SCALE = LOG2E / 16.0
THR = 8.0 / SCALE

def f32hex(x):
    return "0x%08x" % struct.unpack("<I", struct.pack("<f", x))[0]

NW_T = 14
NKV = 32
DMAX = 3

def tile_order():
    t = [("W", i) for i in range(NW_T)]
    t.append(("K", 0))
    for j in range(NKV):
        if j + 1 < NKV:
            t.append(("K", j + 1))
        t.append(("V", j))
    t += [("O", i) for i in range(16)]
    return t

_slots = {}
for _t, _k in enumerate(tile_order()):
    _slots[_k] = (_t % 8) * 16384

def tile_slot(kind, idx):
    return _slots[(kind, idx)]

def nfrag(kind):
    return 14 if kind == "O" else 16

def schedule():
    order = tile_order()
    NT = len(order)
    last = {}
    pred = []
    for tn, (kind, idx) in enumerate(order):
        sl = tile_slot(kind, idx)
        pred.append(last.get(sl, -1))
        last[sl] = tn
    after = {i: [] for i in range(-1, NT)}
    nxt = 0
    for i in range(-1, NT):
        while nxt < NT and (pred[nxt] < 0 or pred[nxt] <= i - 2) and nxt <= max(i, 0) + DMAX:
            after[i].append(nxt)
            nxt += 1
        assert nxt > min(i + 1, NT - 1), "tile must be issued before its barrier"
    return after

def gen_attn(a, name, dbg=False, PF=6, SPLIT=36):
    order = tile_order()
    NT = len(order)
    after = schedule()
    a.raw(f".globl {name}")
    a.raw(".p2align 8")
    a.raw(f".type {name},@function")
    a.label(name)
    a.s("s_cmp_ge_u32 s2, 256")
    a.s(f"s_cbranch_scc1 {name}_end")
    a.s("s_load_dwordx4 s[40:43], s[0:1], 0")
    a.s("s_load_dwordx4 s[44:47], s[0:1], 16")
    a.s("s_load_dwordx2 s[48:49], s[0:1], 56")
    a.s("s_load_dwordx2 s[56:57], s[0:1], 32")
    a.v("v_lshrrev_b32", "v1", "6", "v0")
    a.ins("rfl", "v_readfirstlane_b32 s24, v1", ["v1"], [])
    a.s("s_and_b32 s28, s2, 7")
    a.s("s_lshr_b32 s29, s2, 3")
    a.s("s_and_b32 s26, s29, 1")
    a.s("s_lshr_b32 s27, s29, 2")
    a.s("s_lshl_b32 s28, s28, 1")
    a.s("s_bfe_u32 s29, s29, 0x10001")
    a.s("s_add_u32 s28, s28, s29")
    a.s("s_lshl_b32 s25, s27, 4")
    a.s("s_add_u32 s25, s25, s28")
    a.s("s_waitcnt lgkmcnt(0)")
    def srd(d, lo, nbytes):
        a.s(f"s_mov_b32 s{d}, s{lo}")
        a.s(f"s_and_b32 s{d+1}, s{lo+1}, 0xffff")
        a.s(f"s_mov_b32 s{d+2}, {nbytes}")
        a.s(f"s_mov_b32 s{d+3}, 0x00020000")
    srd(4, 40, 8 * 192 * 448 * 2)
    srd(8, 42, 8 * 16 * 1024 * 256 * 2)
    srd(12, 44, 8 * 16 * 1024 * 256 * 2)
    srd(16, 46, 448 * 4096 * 2)
    srd(20, 48, 16 * 1536 * 448 * 2)
    srd(64, 56, 4096 * 448 * 2)
    if dbg:
        a.s("s_add_u32 s50, s48, 0x6000000")
        a.s("s_addc_u32 s51, s49, 0")
        srd(52, 50, 256)
        a.s("s_memtime s[70:71]")
        a.s("s_memrealtime s[90:91]")
    a.s("s_cmp_lt_u32 s24, 3")
    a.s(f"s_cbranch_scc1 {name}_compute")
    loader_pos = len(a.lines)
    a.label(f"{name}_compute")
    nst = [1]
    def stamp(lvl=1):
        if dbg == lvl and nst[0] < 10:
            a.s(f"s_memtime s[{70+2*nst[0]}:{71+2*nst[0]}]")
            nst[0] += 1

    ACC = 0
    S = [128, 144]
    P = [160, 168]
    AK = 200
    AKH = 232
    AV = 208
    AVH = 212
    MREF, MC, MTHR, LSUM = 216, 217, 218, 219
    T0, T1, T2, T3 = 220, 221, 222, 223
    XOFF, OOFF = 224, 225
    VL, VQ, VH = 226, 227, 228
    ALPHA, TSUM = 229, 230
    LACC = 176
    ONES = 192
    QA = 0
    XA = 64
    FB = 176
    NFB = 8
    a.s(f"s_mov_b32 s30, {f32hex(SCALE)}")
    a.s(f"s_mov_b32 s31, {f32hex(THR)}")
    a.v("v_and_b32", f"v{VL}", "63", "v0")
    a.v("v_and_b32", f"v{VQ}", "31", "v0")
    a.v("v_bfe_u32", f"v{VH}", "v0", "5", "1")
    a.s("s_mul_i32 s32, s27, 192")
    a.s("s_mul_i32 s33, s26, 96")
    a.s("s_add_u32 s32, s32, s33")
    a.s("s_lshl_b32 s33, s24, 5")
    a.s("s_add_u32 s32, s32, s33")
    a.v("v_add_u32", f"v{T0}", "s32", f"v{VQ}")
    a.v("v_mul_u32_u24", f"v{XOFF}", "896", f"v{T0}")
    a.v("v_lshlrev_b32", f"v{T1}", "4", f"v{VH}")
    a.v("v_add_u32", f"v{XOFF}", f"v{XOFF}", f"v{T1}")
    def xload(ks):
        a.bload("buffer_load_dwordx4", f"a[{XA+4*ks}:{XA+4*ks+3}]", f"v{XOFF}", "s[4:7]", "0", ks * 32)
    for ks in range(8):
        xload(ks)
    TW, TO = 240, 241
    a.v("v_lshrrev_b32", f"v{T2}", "2", f"v{VL}")
    a.v("v_and_b32", f"v{T3}", "3", f"v{VL}")
    a.v("v_lshlrev_b32", f"v{T3}", "7", f"v{T3}")
    a.v("v_lshl_add_u32", f"v{TW}", f"v{T2}", "13", f"v{T3}")
    a.v("v_lshlrev_b32", f"v{TO}", "7", f"v{VL}")
    a.s("s_lshr_b32 s33, s32, 5")
    a.s("s_mul_i32 s47, s28, 48")
    a.s("s_add_u32 s33, s33, s47")
    a.s("s_mul_i32 s47, s33, 28*1024")
    a.v("v_lshlrev_b32", f"v{OOFF}", "4", f"v{VL}")
    a.v("v_and_b32", f"v{T0}", "19", f"v{VQ}")
    a.v("v_lshrrev_b32", f"v{T1}", "1", f"v{VQ}")
    a.v("v_and_b32", f"v{T1}", "4", f"v{T1}")
    a.v("v_or_b32", f"v{T0}", f"v{T0}", f"v{T1}")
    a.v("v_lshlrev_b32", f"v{T1}", "1", f"v{VQ}")
    a.v("v_and_b32", f"v{T1}", "8", f"v{T1}")
    a.v("v_or_b32", f"v{T0}", f"v{T0}", f"v{T1}")
    a.v("v_and_b32", f"v{T1}", "15", f"v{T0}")
    a.v("v_xor_b32", f"v{T1}", f"v{T1}", f"v{VH}")
    a.v("v_lshlrev_b32", f"v{T0}", "9", f"v{T0}")
    for e in range(8):
        a.v("v_xor_b32", f"v{T2}", f"{2*e}", f"v{T1}")
        a.v("v_lshl_add_u32", f"v{AK+e}", f"v{T2}", "4", f"v{T0}")
        a.v("v_add_u32", f"v{AKH+e}", "0x10000", f"v{AK+e}")
    a.v("v_bfe_u32", f"v{T0}", f"v{VL}", "2", "2")
    a.v("v_and_b32", f"v{T1}", "1", f"v{VL}")
    a.v("v_bfe_u32", f"v{T2}", f"v{VL}", "1", "1")
    a.v("v_bfe_u32", f"v{T3}", f"v{VL}", "4", "1")
    a.v("v_lshl_add_u32", f"v{T1}", f"v{T3}", "1", f"v{T1}")
    a.v("v_lshlrev_b32", f"v{T1}", "4", f"v{T1}")
    a.v("v_lshl_add_u32", f"v{T1}", f"v{T2}", "3", f"v{T1}")
    a.v("v_lshl_add_u32", f"v{T2}", f"v{VH}", "3", f"v{T0}")
    a.v("v_lshl_add_u32", f"v{T1}", f"v{T2}", "9", f"v{T1}")
    for e in range(4):
        a.v("v_xor_b32", f"v{T2}", f"{e}", f"v{T0}")
        a.v("v_lshl_add_u32", f"v{AV+e}", f"v{T2}", "6", f"v{T1}")
        a.v("v_add_u32", f"v{AVH+e}", "0x10000", f"v{AV+e}")
    a.v("v_mov_b32", f"v{MREF}", "0xff800000")
    a.v("v_mov_b32", f"v{MTHR}", "0xff800000")
    a.v("v_mov_b32", f"v{MC}", "0")
    for i in range(4):
        a.v("v_mov_b32", f"v{ONES+i}", "0x3f803f80")
    for i in range(16):
        a.v("v_mov_b32", f"v{LACC+i}", "0")

    def acc(dt):
        return f"v[{ACC+16*dt}:{ACC+16*dt+15}]"

    pref = [0]
    for kind_, _ in order:
        pref.append(pref[-1] + nfrag(kind_))
    def fbuf(t, i):
        g = (pref[t] + i) % NFB
        return FB + 4 * g

    def fread(t, i):
        kind, idx = order[t]
        base = tile_slot(kind, idx)
        fb = fbuf(t, i)
        if kind == "K":
            off = (base & 0xffff) + (i >> 3) * 256
            a.ds_read("ds_read_b128", f"a[{fb}:{fb+3}]", f"v{(AKH if base >= 65536 else AK) + (i & 7)}", off)
        else:
            dt, kk = i // 2, i % 2
            ar = (AVH if base >= 65536 else AV) + (dt & 3)
            off = (base & 0xffff) + kk * 8192 + (dt >> 2) * 256
            a.ds_read("ds_read_b64_tr_b16", f"a[{fb}:{fb+1}]", f"v{ar}", off)
            a.ds_read("ds_read_b64_tr_b16", f"a[{fb+2}:{fb+3}]", f"v{ar}", off + 2048)

    def step(t, fillers=(), bop=None, first_c0=False, sb=0, lsum=False):
        kind, idx = order[t]
        fillers = list(fillers)
        nf = len(fillers)
        done = 0
        NF = nfrag(kind)
        for i in range(NF):
            if i + PF < NF:
                fread(t, i + PF)
            elif t + 1 < NT:
                fread(t + 1, i + PF - NF)
            fb = fbuf(t, i)
            if i % 2 == 0 and i + 1 < NF:
                f2 = fbuf(t, i + 1)
                a._wait_lds({f"a{f2+x}" for x in range(4)})
            if kind == "K":
                sreg = f"v[{S[sb]}:{S[sb]+15}]"
                a.mfma32(sreg, f"a[{fb}:{fb+3}]", f"a[{QA+4*i}:{QA+4*i+3}]", "0" if i == 0 else sreg)
            else:
                dt, kk = i // 2, i % 2
                c = "0" if (first_c0 and kk == 0) else acc(dt)
                a.mfma32(acc(dt), f"a[{fb}:{fb+3}]", bop(i), c)
            if lsum and i in (5, 10):
                a.mfma32(f"v[{LACC}:{LACC+15}]", f"v[{ONES}:{ONES+3}]", bop(0 if i == 5 else 1), f"v[{LACC}:{LACC+15}]")
            want = (nf * (i + 1) + NF - 1) // NF
            while done < want:
                fillers[done]()
                done += 1

    nbar = [0]
    def barrier():
        a.s("s_barrier")
        nbar[0] += 1

    barrier()
    for i in range(PF):
        fread(0, i)
    for t in range(NW_T):
        if t < 8:
            stamp(2)
        barrier()
        xf = [lambda ks=ks: xload(ks) for ks in (2 * t + 8, 2 * t + 9) if ks < 28]
        step(t, fillers=xf, bop=lambda i, t=t: f"a[{XA+4*(2*t + i % 2)}:{XA+4*(2*t + i % 2)+3}]", first_c0=(t == 0))
    stamp()
    for dt in range(8):
        for hf in range(2):
            ds = 2 * dt + hf
            for r in range(4):
                src = ACC + 16 * dt + 8 * hf + 2 * r
                a.v("v_cvt_pk_bf16_f32", f"v{T0 + (r & 1)}", f"v{src}", f"v{src+1}")
                a.v("v_accvgpr_write_b32", f"a{QA + 4*ds + r}", f"v{T0 + (r & 1)}")
    for i in range(128):
        a.v("v_mov_b32", f"v{ACC+i}", "0")

    cnt = [0]
    def softmax_ops(j):
        Sr = S[j % 2]
        Pr = P[j % 2]
        ops = []
        ops.append(lambda: a.v("v_max3_f32", f"v{T0}", f"v{Sr}", f"v{Sr+1}", f"v{Sr+2}"))
        ops.append(lambda: a.v("v_max3_f32", f"v{T1}", f"v{Sr+3}", f"v{Sr+4}", f"v{Sr+5}"))
        ops.append(lambda: a.v("v_max3_f32", f"v{T2}", f"v{Sr+6}", f"v{Sr+7}", f"v{Sr+8}"))
        ops.append(lambda: a.v("v_max3_f32", f"v{T0}", f"v{T0}", f"v{Sr+9}", f"v{Sr+10}"))
        ops.append(lambda: a.v("v_max3_f32", f"v{T1}", f"v{T1}", f"v{Sr+11}", f"v{Sr+12}"))
        ops.append(lambda: a.v("v_max3_f32", f"v{T2}", f"v{T2}", f"v{Sr+13}", f"v{Sr+14}"))
        ops.append(lambda: a.v("v_max_f32", f"v{T0}", f"v{T0}", f"v{Sr+15}"))
        ops.append(lambda: a.v("v_mov_b32", f"v{ALPHA}", "1.0"))
        ops.append(lambda: a.v("v_max3_f32", f"v{T0}", f"v{T0}", f"v{T1}", f"v{T2}"))
        def red():
            a.v("v_mov_b32", f"v{T1}", f"v{T0}")
            a.permswap32(f"v{T0}", f"v{T1}")
            a.v("v_max_f32", f"v{T0}", f"v{T0}", f"v{T1}")
            a.vcmp("v_cmp_gt_f32", "vcc", f"v{T0}", f"v{MTHR}")
            a.s("s_mov_b32 s46, 0")
            lab = f"{name}_skip{cnt[0]}"
            cnt[0] += 1
            a.s(f"s_cbranch_vccz {lab}")
            snap = a.snapshot()
            a.v("v_max_f32", f"v{T1}", f"v{MREF}", f"v{T0}")
            a.v("v_sub_f32", f"v{T2}", f"v{MREF}", f"v{T1}")
            a.v("v_mul_f32", f"v{T2}", "s30", f"v{T2}")
            a.trans("v_exp_f32", f"v{ALPHA}", f"v{T2}")
            a.v("v_mov_b32", f"v{MREF}", f"v{T1}")
            a.v("v_mul_f32", f"v{MC}", "s30", f"v{T1}")
            a.v("v_add_f32", f"v{MTHR}", "s31", f"v{T1}")
            a.s("s_mov_b32 s46, 1")
            a.flush()
            a.label(lab)
            a.restore(snap)
        ops.append(red)
        fma = lambda i: (lambda: a.v("v_fma_f32", f"v{Sr+i}", f"v{Sr+i}", "s30", f"-v{MC}"))
        ex = lambda i: (lambda: a.trans("v_exp_f32", f"v{Sr+i}", f"v{Sr+i}"))
        def pair(i):
            return [lambda: a.v("v_cvt_pk_bf16_f32", f"v{Pr + i//2}", f"v{Sr+i-1}", f"v{Sr+i}")]
        ops += [fma(0), fma(1), fma(2)]
        late = []
        for i in range(16):
            ops.append(ex(i))
            if i + 3 < 16:
                ops.append(fma(i + 3))
            if late:
                ops.append(late.pop(0))
            if late and i % 2 == 0:
                ops.append(late.pop(0))
            if i % 2 == 1:
                late += pair(i)
        ops += late
        return ops

    def rescale():
        lab = f"{name}_nors{cnt[0]}"
        cnt[0] += 1
        a.s("s_cmp_eq_u32 s46, 0")
        a.s(f"s_cbranch_scc1 {lab}")
        snap = a.snapshot()
        for i in range(128):
            a.v("v_mul_f32", f"v{ACC+i}", f"v{ACC+i}", f"v{ALPHA}")
        a.v("v_mul_f32", f"v{LACC}", f"v{LACC}", f"v{ALPHA}")
        a.flush()
        a.label(lab)
        a.restore(snap)

    t = NW_T
    barrier()
    step(t, sb=0)
    t += 1
    pend = {}
    def iteration(j, t):
        rest = pend.pop(j, None)
        if rest is None:
            rest = softmax_ops(j)
        if j + 1 < NKV:
            barrier()
            step(t, fillers=rest, sb=(j + 1) % 2)
            t += 1
        else:
            for f in rest:
                f()
        if t + 1 < NT:
            barrier()
        rescale()
        pb = lambda i: f"v[{P[j % 2] + 4*(i % 2)}:{P[j % 2] + 4*(i % 2) + 3}]"
        if j + 1 < NKV:
            ops = softmax_ops(j + 1)
            pend[j + 1] = ops[SPLIT:]
            step(t, bop=pb, fillers=ops[:SPLIT], lsum=True)
        else:
            step(t, bop=pb, lsum=True)
        return t + 1

    stamp()
    for j in range(4):
        t = iteration(j, t)
    stamp()
    a.s("s_mov_b32 s34, 0")
    a.flush()
    lq0 = [set(x) for x in a.lds_q]
    a.label(f"{name}_loop")
    tt = t
    for j in range(4, 8):
        tt = iteration(j, tt)
    a.flush()
    assert [set(x) for x in a.lds_q] == lq0, (a.lds_q, lq0)
    a.s("s_add_u32 s34, s34, 1")
    a.s("s_cmp_lt_u32 s34, 6")
    a.s(f"s_cbranch_scc1 {name}_loop")
    nbar[0] += 5 * 8
    stamp()
    t = NW_T + 1 + 2 * 28
    pend[28] = pend.pop(8)
    for j in range(28, 32):
        t = iteration(j, t)
    stamp()
    stamp(3)
    a.trans("v_rcp_f32", f"v{T2}", f"v{LACC}")
    for dt in range(8):
        for hf in range(2):
            ds = 2 * dt + hf
            for r in range(4):
                src = ACC + 16 * dt + 8 * hf + 2 * r
                a.v("v_mul_f32", f"v{src}", f"v{src}", f"v{T2}")
                a.v("v_mul_f32", f"v{src+1}", f"v{src+1}", f"v{T2}")
                a.v("v_cvt_pk_bf16_f32", f"v{T0 + (r & 1)}", f"v{src}", f"v{src+1}")
                a.v("v_accvgpr_write_b32", f"a{QA + 4*ds + r}", f"v{T0 + (r & 1)}")
    for p_ in range(2):
        for tt_ in range(8):
            if tt_ % 4 == 0:
                stamp(3)
            if t + 1 < NT:
                barrier()
            step(t, bop=lambda i, tt_=tt_: f"a[{QA+4*(2*tt_ + i % 2)}:{QA+4*(2*tt_ + i % 2)+3}]", first_c0=(tt_ == 0))
            t += 1
        stamp(3)
        for nt_ in range(7):
            for hf in range(2):
                base = ACC + 16 * nt_ + 8 * hf
                dst = S[0] + 4 * ((2 * nt_ + hf) % 8)
                for r in range(4):
                    a.v("v_cvt_pk_bf16_f32", f"v{dst+r}", f"v{base+2*r}", f"v{base+2*r+1}")
                a.s(f"s_add_u32 s38, s47, {(p_ * 14 + nt_ * 2 + hf) * 1024}")
                a.bstore("buffer_store_dwordx4", f"v[{dst}:{dst+3}]", f"v{OOFF}", "s[20:23]", "s38")
    assert t == NT
    assert nbar[0] == NT, (nbar[0], NT)
    if dbg:
        a.s("s_waitcnt vmcnt(0)")
        stamp(dbg)
        a.s("s_memrealtime s[92:93]")
        a.s("s_waitcnt lgkmcnt(0)")
        a.s("s_cmp_lg_u32 s2, 0")
        a.s(f"s_cbranch_scc1 {name}_nodbg")
        a.s("s_cmp_lg_u32 s24, 0")
        a.s(f"s_cbranch_scc1 {name}_nodbg")
        a.v("v_mov_b32", "v1", "0")
        for i in range(1, nst[0]):
            a.s(f"s_sub_u32 s{70+2*i}, s{70+2*i}, s70")
            a.v("v_mov_b32", "v2", f"s{70+2*i}")
            a.bstore("buffer_store_dword", "v2", "v1", "s[52:55]", "0", 4 * i)
        a.s("s_sub_u32 s92, s92, s90")
        a.v("v_mov_b32", "v2", "s92")
        a.bstore("buffer_store_dword", "v2", "v1", "s[52:55]", "0", 60)
        a.label(f"{name}_nodbg")
    a.s("s_endpgm")

    b = Asm()
    b.label(f"{name}_loader")
    b.v("v_and_b32", "v1", "63", "v0")
    b.v("v_lshrrev_b32", "v2", "5", "v1")
    b.v("v_and_b32", "v3", "31", "v1")
    for e in range(2):
        b.v("v_add_u32", "v4", f"{2*e}", "v2")
        b.v("v_and_b32", "v4", "3", "v4")
        b.v("v_lshlrev_b32", "v4", "2", "v4")
        b.v("v_xor_b32", "v4", "v4", "v3")
        b.v("v_lshlrev_b32", "v4", "4", "v4")
        b.v("v_lshl_add_u32", f"v{24+e}", "v2", "9", "v4")
        b.v("v_lshl_add_u32", f"v{26+e}", "v2", "13", "v4")
        b.v("v_mul_u32_u24", "v5", "896", "v2")
        b.v("v_add_u32", f"v{28+e}", "v5", "v4")
    b.s("s_lshl_b32 s35, s25, 19")
    b.s("s_lshl_b32 s36, s28, 9")
    b.s("s_mul_i32 s37, s28, 256*896")
    b.s("s_mov_b32 s39, 0")
    b.s("s_mov_b32 s40, s36")
    b.s("s_mov_b32 s41, s35")
    b.s("s_mov_b32 s42, s35")
    b.s("s_mov_b32 s43, s37")
    def issue(kind):
        src = {"W": "s40", "K": "s41", "V": "s42", "O": "s43"}[kind]
        stride = {"W": 16384, "K": 1024, "V": 1024, "O": 1792}[kind]
        for n in range(16):
            b.s(f"s_add_u32 m0, s39, {n * 1024}")
            b.s(f"s_add_u32 s38, {src}, {n * stride}")
            if kind == "W":
                b.bload_lds(f"v{26 + n % 2}", "s[16:19]", "s38")
            elif kind == "O":
                b.bload_lds(f"v{28 + n % 2}", "s[64:67]", "s38")
            elif kind == "K":
                b.bload_lds(f"v{16 + n % 8}", "s[8:11]", "s38", flags=" nt")
            else:
                b.bload_lds(f"v{24 + n % 2}", "s[12:15]", "s38", flags=" nt")
        b.s(f"s_add_u32 {src}, {src}, {16 * stride}")
        b.s("s_add_u32 s39, s39, 0x4000")
        b.s("s_and_b32 s39, s39, 0x1ffff")
    def wb(n=32):
        b.s(f"s_waitcnt vmcnt({n})")
        b.s("s_barrier")
    D = 3
    for tn in range(D):
        issue(order[tn][0])
    for e in range(8):
        b.v("v_add_u32", "v4", f"{2*e}", "v2")
        b.v("v_and_b32", "v4", "15", "v4")
        b.v("v_xor_b32", "v4", "v4", "v3")
        b.v("v_lshlrev_b32", "v4", "4", "v4")
        b.v("v_lshl_add_u32", f"v{16+e}", "v2", "9", "v4")
    def loop(label, trips, kinds):
        b.s("s_mov_b32 s34, 0")
        b.label(label)
        for k in kinds:
            wb()
            issue(k)
        b.s("s_add_u32 s34, s34, 1")
        b.s(f"s_cmp_lt_u32 s34, {trips}")
        b.s(f"s_cbranch_scc1 {label}")
    i = 0
    loop(f"{name}_lw", NW_T - D, ["W"]); i += NW_T - D
    wb(); issue("K"); i += 1
    loop(f"{name}_lm", NKV - 1, ["K", "V"]); i += 2 * (NKV - 1)
    wb(); issue("V"); i += 1
    loop(f"{name}_lo1", 8, ["O"]); i += 8
    b.s(f"s_add_u32 s43, s37, 448")
    loop(f"{name}_lo2", 8, ["O"]); i += 8
    assert i + D == NT, (i, NT)
    wb(32); wb(16); wb(0)
    b.s("s_endpgm")
    a.lines[loader_pos:loader_pos] = b.lines
    a.label(f"{name}_end")
    a.s("s_endpgm")

def kd(name, vgpr=256, agpr=208, sgpr=96):
    return f""".section .rodata,"a"
.p2align 6
.amdhsa_kernel {name}
  .amdhsa_next_free_vgpr {vgpr + agpr}
  .amdhsa_next_free_sgpr {sgpr}
  .amdhsa_accum_offset {vgpr}
  .amdhsa_group_segment_fixed_size 0
  .amdhsa_kernarg_size 64
  .amdhsa_user_sgpr_count 2
  .amdhsa_user_sgpr_kernarg_segment_ptr 1
  .amdhsa_system_sgpr_workgroup_id_x 1
.end_amdhsa_kernel
.text
"""
```

```python
from asmlib import Asm
def gen_reduce(a, name, dbg=False):
    a.raw(f".globl {name}")
    a.raw(".p2align 8")
    a.raw(f".type {name},@function")
    a.label(name)
    a.s("s_cmp_ge_u32 s2, 336")
    a.s(f"s_cbranch_scc1 {name}_end")
    a.s("s_load_dwordx2 s[40:41], s[0:1], 40")
    a.s("s_load_dwordx2 s[42:43], s[0:1], 56")
    a.s("s_lshl_b32 s3, s2, 12")
    a.v("v_lshlrev_b32", "v1", "4", "v0")
    a.v("v_add_u32", "v1", "s3", "v1")
    a.v("v_lshrrev_b32", "v2", "10", "v1")
    a.s("s_mov_b32 s13, 9363")
    a.v("v_mul_u32_u24", "v3", "s13", "v2")
    a.v("v_lshrrev_b32", "v3", "18", "v3")
    a.v("v_mul_u32_u24", "v4", "28", "v3")
    a.v("v_sub_u32", "v4", "v2", "v4")
    a.v("v_and_b32", "v5", "31", "v0")
    a.v("v_lshl_add_u32", "v5", "v3", "5", "v5")
    a.v("v_mul_u32_u24", "v5", "896", "v5")
    a.v("v_lshl_add_u32", "v5", "v4", "5", "v5")
    a.v("v_bfe_u32", "v6", "v0", "5", "1")
    a.v("v_lshl_add_u32", "v80", "v6", "4", "v5")
    a.s("s_waitcnt lgkmcnt(0)")
    def srd(d, lo, nbytes):
        a.s(f"s_mov_b32 s{d}, s{lo}")
        a.s(f"s_and_b32 s{d+1}, s{lo+1}, 0xffff")
        a.s(f"s_mov_b32 s{d+2}, {nbytes}")
        a.s(f"s_mov_b32 s{d+3}, 0x00020000")
    srd(4, 40, 1536 * 448 * 2)
    srd(8, 42, 16 * 1536 * 448 * 2)
    for h in range(16):
        a.s(f"s_mov_b32 s12, {h * 1536 * 896}")
        a.bload("buffer_load_dwordx4", f"v[{8+4*h}:{11+4*h}]", "v1", "s[8:11]", "s12")
    for h in range(16):
        for r in range(4):
            src = 8 + 4 * h + r
            if h == 0:
                a.v("v_lshlrev_b32", f"v{72+2*r}", "16", f"v{src}")
                a.v("v_and_b32", f"v{73+2*r}", "0xffff0000", f"v{src}")
            else:
                a.v("v_lshlrev_b32", "v2", "16", f"v{src}")
                a.v("v_and_b32", "v3", "0xffff0000", f"v{src}")
                a.v("v_add_f32", f"v{72+2*r}", f"v{72+2*r}", "v2")
                a.v("v_add_f32", f"v{73+2*r}", f"v{73+2*r}", "v3")
    for r in range(4):
        a.v("v_cvt_pk_bf16_f32", f"v{4+r}", f"v{72+2*r}", f"v{73+2*r}")
    a.bstore("buffer_store_dwordx4", "v[4:7]", "v80", "s[4:7]", "0")
    if dbg:
        a.s("s_cmp_lg_u32 s2, 0")
        a.s(f"s_cbranch_scc1 {name}_end")
        a.s("s_load_dwordx2 s[44:45], s[0:1], 48")
        a.s("s_add_u32 s42, s42, 0x6000000")
        a.s("s_addc_u32 s43, s43, 0")
        a.s("s_waitcnt lgkmcnt(0)")
        srd(16, 42, 256)
        srd(20, 44, 256)
        a.v("v_lshlrev_b32", "v2", "2", "v0")
        a.bload("buffer_load_dword", "v3", "v2", "s[16:19]", "0")
        a.bstore("buffer_store_dword", "v3", "v2", "s[20:23]", "0")
    a.label(f"{name}_end")
    a.s("s_endpgm")
```

```python
import re

def R(kind, lo, n=1):
    if n == 1:
        return f"{kind}{lo}", [f"{kind}{lo}"]
    return f"{kind}[{lo}:{lo+n-1}]", [f"{kind}{i}" for i in range(lo, lo + n)]

def regs_of(text):
    text = text.strip()
    m = re.fullmatch(r"-?([va])\[(\d+):(\d+)\]", text)
    if m:
        return [f"{m.group(1)}{i}" for i in range(int(m.group(2)), int(m.group(3)) + 1)]
    m = re.fullmatch(r"-?([va])(\d+)", text)
    if m:
        return [f"{m.group(1)}{m.group(2)}"]
    return []

class Asm:
    def __init__(self):
        self.lines = []
        self.pos = 0
        self.valu_w = {}
        self.trans_w = {}
        self.mfma_w = {}
        self.mfma_c = {}
        self.store_d = {}
        self.lds_q = []
        self.vm_q = []
        self.nnop = 0

    def raw(self, s):
        self.lines.append(s)

    def label(self, name):
        self.lines.append(f"{name}:")

    def _slot(self, s, n=1):
        self.lines.append("    " + s)
        self.pos += n

    def nop(self, n):
        while n > 0:
            k = min(n, 16)
            self._slot(f"s_nop {k-1}", k)
            self.nnop += k
            n -= k

    def _need(self, ppos, n):
        return n - (self.pos - ppos - 1)

    def _wait_lds(self, regs):
        idx = -1
        for i, e in enumerate(self.lds_q):
            if e & regs:
                idx = i
        if idx >= 0:
            n = len(self.lds_q) - 1 - idx
            n = min(n, 15)
            self._slot(f"s_waitcnt lgkmcnt({n})")
            self.lds_q = self.lds_q[len(self.lds_q) - n:] if n > 0 else []

    def _wait_vm(self, regs):
        idx = -1
        for i, e in enumerate(self.vm_q):
            if e & regs:
                idx = i
        if idx >= 0:
            n = len(self.vm_q) - 1 - idx
            n = min(n, 63)
            self._slot(f"s_waitcnt vmcnt({n})")
            self.vm_q = self.vm_q[len(self.vm_q) - n:] if n > 0 else []

    def wait_lgkm(self, n=0):
        self._slot(f"s_waitcnt lgkmcnt({n})")
        self.lds_q = self.lds_q[len(self.lds_q) - n:] if n > 0 else []

    def wait_vm(self, n=0):
        self._slot(f"s_waitcnt vmcnt({n})")
        self.vm_q = self.vm_q[len(self.vm_q) - n:] if n > 0 else []

    def ins(self, kind, text, reads=(), writes=(), srcc=(), passes=0):
        reads = set(reads); writes = set(writes); srcc = set(srcc)
        allr = reads | writes | srcc
        self._wait_lds(allr)
        self._wait_vm(allr)
        need = 0
        if kind == "mfma":
            for r in reads | srcc:
                if r in self.valu_w:
                    need = max(need, self._need(self.valu_w[r], 2))
            for r in reads:
                if r in self.mfma_w:
                    p, ps, _ = self.mfma_w[r]
                    need = max(need, self._need(p, 12 if ps == 8 else 8))
            ctuple = tuple(sorted(srcc))
            for r in srcc:
                if r in self.mfma_w:
                    p, ps, dr = self.mfma_w[r]
                    if dr == ctuple and ps == passes:
                        continue
                    need = max(need, self._need(p, 10 if ps == 8 else 6))
        else:
            for r in reads | writes:
                if r in self.mfma_w:
                    p, ps, _ = self.mfma_w[r]
                    need = max(need, self._need(p, 12 if ps == 8 else 8))
            if kind in ("valu", "trans", "permlane", "rfl"):
                for r in writes:
                    if r in self.mfma_c:
                        p, ps = self.mfma_c[r]
                        need = max(need, self._need(p, 7 if ps == 8 else 3))
                    if r in self.store_d:
                        need = max(need, self._need(self.store_d[r], 2))
            else:
                for r in writes:
                    if r in self.store_d:
                        need = max(need, self._need(self.store_d[r], 2))
            if kind in ("valu", "permlane", "rfl"):
                for r in reads:
                    if r in self.trans_w:
                        need = max(need, self._need(self.trans_w[r], 1))
            if kind == "permlane":
                for r in reads:
                    if r in self.valu_w:
                        need = max(need, self._need(self.valu_w[r], 2))
            if kind == "rfl":
                for r in reads:
                    if r in self.valu_w:
                        need = max(need, self._need(self.valu_w[r], 1))
        if need > 0:
            self.nop(need)
        p = self.pos
        self._slot(text)
        if kind in ("valu", "trans", "permlane"):
            for r in writes:
                self.valu_w[r] = p
                self.trans_w.pop(r, None)
                self.mfma_w.pop(r, None)
                if kind == "trans":
                    self.trans_w[r] = p
        elif kind == "mfma":
            dr = tuple(sorted(writes))
            for r in writes:
                self.mfma_w[r] = (p, passes, dr)
                self.valu_w.pop(r, None)
            for r in srcc:
                self.mfma_c[r] = (p, passes)
        elif kind == "dsr":
            self.lds_q.append(set(writes))
            for r in writes:
                self.valu_w.pop(r, None); self.mfma_w.pop(r, None); self.trans_w.pop(r, None)
        elif kind == "dsw":
            self.lds_q.append(set())
        elif kind == "vml":
            self.vm_q.append(set(writes))
            for r in writes:
                self.valu_w.pop(r, None); self.mfma_w.pop(r, None); self.trans_w.pop(r, None)
        elif kind == "vms":
            self.vm_q.append(set())
            for r in reads:
                self.store_d[r] = p
        return p

    def dma(self, text, reads, tag):
        self._wait_lds(set(reads)); self._wait_vm(set(reads))
        self._slot(text)
        self.vm_q.append({tag})

    def flush(self):
        need = 0
        for r, (p, ps, _) in self.mfma_w.items():
            need = max(need, self._need(p, 12 if ps == 8 else 8))
        for r, (p, ps) in self.mfma_c.items():
            need = max(need, self._need(p, 7 if ps == 8 else 3))
        for r, p in self.valu_w.items():
            need = max(need, self._need(p, 2))
        for r, p in self.store_d.items():
            need = max(need, self._need(p, 2))
        if need > 0:
            self.nop(need)

    def snapshot(self):
        import copy
        return copy.deepcopy((self.pos, self.valu_w, self.trans_w, self.mfma_w, self.mfma_c,
                              self.store_d, self.lds_q, self.vm_q))

    def restore(self, snap):
        import copy
        (self.pos, self.valu_w, self.trans_w, self.mfma_w, self.mfma_c,
         self.store_d, self.lds_q, self.vm_q) = copy.deepcopy(snap)

    def s(self, text):
        self._slot(text)

    def v(self, op, dst, *srcs, kind="valu", extra_reads=()):
        reads = []
        for x in srcs:
            reads += regs_of(x)
        reads += list(extra_reads)
        self.ins(kind, f"{op} {dst}, " + ", ".join(srcs), reads, regs_of(dst))

    def trans(self, op, dst, src):
        self.ins("trans", f"{op} {dst}, {src}", regs_of(src), regs_of(dst))

    def vcmp(self, op, dst, a, b):
        self.ins("valu", f"{op} {dst}, {a}, {b}", regs_of(a) + regs_of(b), [])

    def permswap32(self, a, b):
        self.ins("permlane", f"v_permlane32_swap_b32 {a}, {b}", regs_of(a) + regs_of(b), regs_of(a) + regs_of(b))

    def mfma32(self, d, a, b, c):
        self.ins("mfma", f"v_mfma_f32_32x32x16_bf16 {d}, {a}, {b}, {c}",
                 regs_of(a) + regs_of(b), regs_of(d), regs_of(c), passes=8)

    def mfma16(self, d, a, b, c):
        self.ins("mfma", f"v_mfma_f32_16x16x32_bf16 {d}, {a}, {b}, {c}",
                 regs_of(a) + regs_of(b), regs_of(d), regs_of(c), passes=4)

    def ds_read(self, op, dst, addr, off=0):
        o = f" offset:{off}" if off else ""
        self.ins("dsr", f"{op} {dst}, {addr}{o}", regs_of(addr), regs_of(dst))

    def ds_write(self, op, addr, data, off=0):
        o = f" offset:{off}" if off else ""
        self.ins("dsw", f"{op} {addr}, {data}{o}", regs_of(addr) + regs_of(data), [])

    def bload(self, op, dst, voff, srd, soff="0", off=0, flags=""):
        o = f" offset:{off}" if off else ""
        self.ins("vml", f"{op} {dst}, {voff}, {srd}, {soff} offen{o}{flags}", regs_of(voff), regs_of(dst))

    def bload_lds(self, voff, srd, soff, off=0, flags=""):
        o = f" offset:{off}" if off else ""
        self.ins("vml", f"buffer_load_dwordx4 {voff}, {srd}, {soff} offen{o}{flags} lds", regs_of(voff), [])

    def bstore(self, op, data, voff, srd, soff="0", off=0, flags=""):
        o = f" offset:{off}" if off else ""
        self.ins("vms", f"{op} {data}, {voff}, {srd}, {soff} offen{o}{flags}", regs_of(voff) + regs_of(data), [])

    def text(self):
        return "\n".join(self.lines) + "\n"
```

```python
from asmlib import Asm, R
import struct

LOG2E = 1.4426950408889634
SCALE = LOG2E / 16.0
THR = 8.0 / SCALE

def f32hex(x):
    return "0x%08x" % struct.unpack("<I", struct.pack("<f", x))[0]

NW_T = 14
NKV = 32
DMAX = 3

def tile_order():
    t = [("W", i) for i in range(NW_T)]
    t.append(("K", 0))
    for j in range(NKV):
        if j + 1 < NKV:
            t.append(("K", j + 1))
        t.append(("V", j))
    t += [("O", i) for i in range(16)]
    return t

_slots = {}
for _t, _k in enumerate(tile_order()):
    _slots[_k] = (_t % 8) * 16384

def tile_slot(kind, idx):
    return _slots[(kind, idx)]

def nfrag(kind):
    return 14 if kind == "O" else 16

def schedule():
    order = tile_order()
    NT = len(order)
    last = {}
    pred = []
    for tn, (kind, idx) in enumerate(order):
        sl = tile_slot(kind, idx)
        pred.append(last.get(sl, -1))
        last[sl] = tn
    after = {i: [] for i in range(-1, NT)}
    nxt = 0
    for i in range(-1, NT):
        while nxt < NT and (pred[nxt] < 0 or pred[nxt] <= i - 2) and nxt <= max(i, 0) + DMAX:
            after[i].append(nxt)
            nxt += 1
        assert nxt > min(i + 1, NT - 1), "tile must be issued before its barrier"
    return after

def gen_attn(a, name, dbg=False, PF=6, SPLIT=36):
    order = tile_order()
    NT = len(order)
    after = schedule()
    a.raw(f".globl {name}")
    a.raw(".p2align 8")
    a.raw(f".type {name},@function")
    a.label(name)
    a.s("s_cmp_ge_u32 s2, 256")
    a.s(f"s_cbranch_scc1 {name}_end")
    a.s("s_load_dwordx4 s[40:43], s[0:1], 0")
    a.s("s_load_dwordx4 s[44:47], s[0:1], 16")
    a.s("s_load_dwordx2 s[48:49], s[0:1], 56")
    a.s("s_load_dwordx2 s[56:57], s[0:1], 32")
    a.v("v_lshrrev_b32", "v1", "6", "v0")
    a.ins("rfl", "v_readfirstlane_b32 s24, v1", ["v1"], [])
    a.s("s_and_b32 s28, s2, 7")
    a.s("s_lshr_b32 s29, s2, 3")
    a.s("s_and_b32 s26, s29, 1")
    a.s("s_lshr_b32 s27, s29, 2")
    a.s("s_lshl_b32 s28, s28, 1")
    a.s("s_bfe_u32 s29, s29, 0x10001")
    a.s("s_add_u32 s28, s28, s29")
    a.s("s_lshl_b32 s25, s27, 4")
    a.s("s_add_u32 s25, s25, s28")
    a.s("s_waitcnt lgkmcnt(0)")
    def srd(d, lo, nbytes):
        a.s(f"s_mov_b32 s{d}, s{lo}")
        a.s(f"s_and_b32 s{d+1}, s{lo+1}, 0xffff")
        a.s(f"s_mov_b32 s{d+2}, {nbytes}")
        a.s(f"s_mov_b32 s{d+3}, 0x00020000")
    srd(4, 40, 8 * 192 * 448 * 2)
    srd(8, 42, 8 * 16 * 1024 * 256 * 2)
    srd(12, 44, 8 * 16 * 1024 * 256 * 2)
    srd(16, 46, 448 * 4096 * 2)
    srd(20, 48, 16 * 1536 * 448 * 2)
    srd(64, 56, 4096 * 448 * 2)
    if dbg:
        a.s("s_add_u32 s50, s48, 0x6000000")
        a.s("s_addc_u32 s51, s49, 0")
        srd(52, 50, 256)
        a.s("s_memtime s[70:71]")
        a.s("s_memrealtime s[90:91]")
    a.s("s_cmp_lt_u32 s24, 3")
    a.s(f"s_cbranch_scc1 {name}_compute")
    loader_pos = len(a.lines)
    a.label(f"{name}_compute")
    nst = [1]
    def stamp(lvl=1):
        if dbg == lvl and nst[0] < 10:
            a.s(f"s_memtime s[{70+2*nst[0]}:{71+2*nst[0]}]")
            nst[0] += 1

    ACC = 0
    S = [128, 144]
    P = [160, 168]
    AK = 200
    AKH = 232
    AV = 208
    AVH = 212
    MREF, MC, MTHR, LSUM = 216, 217, 218, 219
    T0, T1, T2, T3 = 220, 221, 222, 223
    XOFF, OOFF = 224, 225
    VL, VQ, VH = 226, 227, 228
    ALPHA, TSUM = 229, 230
    LACC = 176
    ONES = 192
    QA = 0
    XA = 64
    FB = 176
    NFB = 8
    a.s(f"s_mov_b32 s30, {f32hex(SCALE)}")
    a.s(f"s_mov_b32 s31, {f32hex(THR)}")
    a.v("v_and_b32", f"v{VL}", "63", "v0")
    a.v("v_and_b32", f"v{VQ}", "31", "v0")
    a.v("v_bfe_u32", f"v{VH}", "v0", "5", "1")
    a.s("s_mul_i32 s32, s27, 192")
    a.s("s_mul_i32 s33, s26, 96")
    a.s("s_add_u32 s32, s32, s33")
    a.s("s_lshl_b32 s33, s24, 5")
    a.s("s_add_u32 s32, s32, s33")
    a.v("v_add_u32", f"v{T0}", "s32", f"v{VQ}")
    a.v("v_mul_u32_u24", f"v{XOFF}", "896", f"v{T0}")
    a.v("v_lshlrev_b32", f"v{T1}", "4", f"v{VH}")
    a.v("v_add_u32", f"v{XOFF}", f"v{XOFF}", f"v{T1}")
    def xload(ks):
        a.bload("buffer_load_dwordx4", f"a[{XA+4*ks}:{XA+4*ks+3}]", f"v{XOFF}", "s[4:7]", "0", ks * 32)
    for ks in range(8):
        xload(ks)
    TW, TO = 240, 241
    a.v("v_lshrrev_b32", f"v{T2}", "2", f"v{VL}")
    a.v("v_and_b32", f"v{T3}", "3", f"v{VL}")
    a.v("v_lshlrev_b32", f"v{T3}", "7", f"v{T3}")
    a.v("v_lshl_add_u32", f"v{TW}", f"v{T2}", "13", f"v{T3}")
    a.v("v_lshlrev_b32", f"v{TO}", "7", f"v{VL}")
    a.s("s_lshr_b32 s33, s32, 5")
    a.s("s_mul_i32 s47, s28, 48")
    a.s("s_add_u32 s33, s33, s47")
    a.s("s_mul_i32 s47, s33, 28*1024")
    a.v("v_lshlrev_b32", f"v{OOFF}", "4", f"v{VL}")
    a.v("v_and_b32", f"v{T0}", "19", f"v{VQ}")
    a.v("v_lshrrev_b32", f"v{T1}", "1", f"v{VQ}")
    a.v("v_and_b32", f"v{T1}", "4", f"v{T1}")
    a.v("v_or_b32", f"v{T0}", f"v{T0}", f"v{T1}")
    a.v("v_lshlrev_b32", f"v{T1}", "1", f"v{VQ}")
    a.v("v_and_b32", f"v{T1}", "8", f"v{T1}")
    a.v("v_or_b32", f"v{T0}", f"v{T0}", f"v{T1}")
    a.v("v_and_b32", f"v{T1}", "15", f"v{T0}")
    a.v("v_xor_b32", f"v{T1}", f"v{T1}", f"v{VH}")
    a.v("v_lshlrev_b32", f"v{T0}", "9", f"v{T0}")
    for e in range(8):
        a.v("v_xor_b32", f"v{T2}", f"{2*e}", f"v{T1}")
        a.v("v_lshl_add_u32", f"v{AK+e}", f"v{T2}", "4", f"v{T0}")
        a.v("v_add_u32", f"v{AKH+e}", "0x10000", f"v{AK+e}")
    a.v("v_bfe_u32", f"v{T0}", f"v{VL}", "2", "2")
    a.v("v_and_b32", f"v{T1}", "1", f"v{VL}")
    a.v("v_bfe_u32", f"v{T2}", f"v{VL}", "1", "1")
    a.v("v_bfe_u32", f"v{T3}", f"v{VL}", "4", "1")
    a.v("v_lshl_add_u32", f"v{T1}", f"v{T3}", "1", f"v{T1}")
    a.v("v_lshlrev_b32", f"v{T1}", "4", f"v{T1}")
    a.v("v_lshl_add_u32", f"v{T1}", f"v{T2}", "3", f"v{T1}")
    a.v("v_lshl_add_u32", f"v{T2}", f"v{VH}", "3", f"v{T0}")
    a.v("v_lshl_add_u32", f"v{T1}", f"v{T2}", "9", f"v{T1}")
    for e in range(4):
        a.v("v_xor_b32", f"v{T2}", f"{e}", f"v{T0}")
        a.v("v_lshl_add_u32", f"v{AV+e}", f"v{T2}", "6", f"v{T1}")
        a.v("v_add_u32", f"v{AVH+e}", "0x10000", f"v{AV+e}")
    a.v("v_mov_b32", f"v{MREF}", "0xff800000")
    a.v("v_mov_b32", f"v{MTHR}", "0xff800000")
    a.v("v_mov_b32", f"v{MC}", "0")
    for i in range(4):
        a.v("v_mov_b32", f"v{ONES+i}", "0x3f803f80")
    for i in range(16):
        a.v("v_mov_b32", f"v{LACC+i}", "0")

    def acc(dt):
        return f"v[{ACC+16*dt}:{ACC+16*dt+15}]"

    pref = [0]
    for kind_, _ in order:
        pref.append(pref[-1] + nfrag(kind_))
    def fbuf(t, i):
        g = (pref[t] + i) % NFB
        return FB + 4 * g

    def fread(t, i):
        kind, idx = order[t]
        base = tile_slot(kind, idx)
        fb = fbuf(t, i)
        if kind == "K":
            off = (base & 0xffff) + (i >> 3) * 256
            a.ds_read("ds_read_b128", f"a[{fb}:{fb+3}]", f"v{(AKH if base >= 65536 else AK) + (i & 7)}", off)
        else:
            dt, kk = i // 2, i % 2
            ar = (AVH if base >= 65536 else AV) + (dt & 3)
            off = (base & 0xffff) + kk * 8192 + (dt >> 2) * 256
            a.ds_read("ds_read_b64_tr_b16", f"a[{fb}:{fb+1}]", f"v{ar}", off)
            a.ds_read("ds_read_b64_tr_b16", f"a[{fb+2}:{fb+3}]", f"v{ar}", off + 2048)

    def step(t, fillers=(), bop=None, first_c0=False, sb=0, lsum=False):
        kind, idx = order[t]
        fillers = list(fillers)
        nf = len(fillers)
        done = 0
        NF = nfrag(kind)
        for i in range(NF):
            if i + PF < NF:
                fread(t, i + PF)
            elif t + 1 < NT:
                fread(t + 1, i + PF - NF)
            fb = fbuf(t, i)
            if i % 2 == 0 and i + 1 < NF:
                f2 = fbuf(t, i + 1)
                a._wait_lds({f"a{f2+x}" for x in range(4)})
            if kind == "K":
                sreg = f"v[{S[sb]}:{S[sb]+15}]"
                a.mfma32(sreg, f"a[{fb}:{fb+3}]", f"a[{QA+4*i}:{QA+4*i+3}]", "0" if i == 0 else sreg)
            else:
                dt, kk = i // 2, i % 2
                c = "0" if (first_c0 and kk == 0) else acc(dt)
                a.mfma32(acc(dt), f"a[{fb}:{fb+3}]", bop(i), c)
            if lsum and i in (5, 10):
                a.mfma32(f"v[{LACC}:{LACC+15}]", f"v[{ONES}:{ONES+3}]", bop(0 if i == 5 else 1), f"v[{LACC}:{LACC+15}]")
            want = (nf * (i + 1) + NF - 1) // NF
            while done < want:
                fillers[done]()
                done += 1

    nbar = [0]
    def barrier():
        a.s("s_barrier")
        nbar[0] += 1

    barrier()
    for i in range(PF):
        fread(0, i)
    for t in range(NW_T):
        if t < 8:
            stamp(2)
        barrier()
        xf = [lambda ks=ks: xload(ks) for ks in (2 * t + 8, 2 * t + 9) if ks < 28]
        step(t, fillers=xf, bop=lambda i, t=t: f"a[{XA+4*(2*t + i % 2)}:{XA+4*(2*t + i % 2)+3}]", first_c0=(t == 0))
    stamp()
    for dt in range(8):
        for hf in range(2):
            ds = 2 * dt + hf
            for r in range(4):
                src = ACC + 16 * dt + 8 * hf + 2 * r
                a.v("v_cvt_pk_bf16_f32", f"v{T0 + (r & 1)}", f"v{src}", f"v{src+1}")
                a.v("v_accvgpr_write_b32", f"a{QA + 4*ds + r}", f"v{T0 + (r & 1)}")
    for i in range(128):
        a.v("v_mov_b32", f"v{ACC+i}", "0")

    cnt = [0]
    def softmax_ops(j):
        Sr = S[j % 2]
        Pr = P[j % 2]
        ops = []
        ops.append(lambda: a.v("v_max3_f32", f"v{T0}", f"v{Sr}", f"v{Sr+1}", f"v{Sr+2}"))
        ops.append(lambda: a.v("v_max3_f32", f"v{T1}", f"v{Sr+3}", f"v{Sr+4}", f"v{Sr+5}"))
        ops.append(lambda: a.v("v_max3_f32", f"v{T2}", f"v{Sr+6}", f"v{Sr+7}", f"v{Sr+8}"))
        ops.append(lambda: a.v("v_max3_f32", f"v{T0}", f"v{T0}", f"v{Sr+9}", f"v{Sr+10}"))
        ops.append(lambda: a.v("v_max3_f32", f"v{T1}", f"v{T1}", f"v{Sr+11}", f"v{Sr+12}"))
        ops.append(lambda: a.v("v_max3_f32", f"v{T2}", f"v{T2}", f"v{Sr+13}", f"v{Sr+14}"))
        ops.append(lambda: a.v("v_max_f32", f"v{T0}", f"v{T0}", f"v{Sr+15}"))
        ops.append(lambda: a.v("v_mov_b32", f"v{ALPHA}", "1.0"))
        ops.append(lambda: a.v("v_max3_f32", f"v{T0}", f"v{T0}", f"v{T1}", f"v{T2}"))
        def red():
            a.v("v_mov_b32", f"v{T1}", f"v{T0}")
            a.permswap32(f"v{T0}", f"v{T1}")
            a.v("v_max_f32", f"v{T0}", f"v{T0}", f"v{T1}")
            a.vcmp("v_cmp_gt_f32", "vcc", f"v{T0}", f"v{MTHR}")
            a.s("s_mov_b32 s46, 0")
            lab = f"{name}_skip{cnt[0]}"
            cnt[0] += 1
            a.s(f"s_cbranch_vccz {lab}")
            snap = a.snapshot()
            a.v("v_max_f32", f"v{T1}", f"v{MREF}", f"v{T0}")
            a.v("v_sub_f32", f"v{T2}", f"v{MREF}", f"v{T1}")
            a.v("v_mul_f32", f"v{T2}", "s30", f"v{T2}")
            a.trans("v_exp_f32", f"v{ALPHA}", f"v{T2}")
            a.v("v_mov_b32", f"v{MREF}", f"v{T1}")
            a.v("v_mul_f32", f"v{MC}", "s30", f"v{T1}")
            a.v("v_add_f32", f"v{MTHR}", "s31", f"v{T1}")
            a.s("s_mov_b32 s46, 1")
            a.flush()
            a.label(lab)
            a.restore(snap)
        ops.append(red)
        fma = lambda i: (lambda: a.v("v_fma_f32", f"v{Sr+i}", f"v{Sr+i}", "s30", f"-v{MC}"))
        ex = lambda i: (lambda: a.trans("v_exp_f32", f"v{Sr+i}", f"v{Sr+i}"))
        def pair(i):
            return [lambda: a.v("v_cvt_pk_bf16_f32", f"v{Pr + i//2}", f"v{Sr+i-1}", f"v{Sr+i}")]
        ops += [fma(0), fma(1), fma(2)]
        late = []
        for i in range(16):
            ops.append(ex(i))
            if i + 3 < 16:
                ops.append(fma(i + 3))
            if late:
                ops.append(late.pop(0))
            if late and i % 2 == 0:
                ops.append(late.pop(0))
            if i % 2 == 1:
                late += pair(i)
        ops += late
        return ops

    def rescale():
        lab = f"{name}_nors{cnt[0]}"
        cnt[0] += 1
        a.s("s_cmp_eq_u32 s46, 0")
        a.s(f"s_cbranch_scc1 {lab}")
        snap = a.snapshot()
        for i in range(128):
            a.v("v_mul_f32", f"v{ACC+i}", f"v{ACC+i}", f"v{ALPHA}")
        a.v("v_mul_f32", f"v{LACC}", f"v{LACC}", f"v{ALPHA}")
        a.flush()
        a.label(lab)
        a.restore(snap)

    t = NW_T
    barrier()
    step(t, sb=0)
    t += 1
    pend = {}
    def iteration(j, t):
        rest = pend.pop(j, None)
        if rest is None:
            rest = softmax_ops(j)
        if j + 1 < NKV:
            barrier()
            step(t, fillers=rest, sb=(j + 1) % 2)
            t += 1
        else:
            for f in rest:
                f()
        if t + 1 < NT:
            barrier()
        rescale()
        pb = lambda i: f"v[{P[j % 2] + 4*(i % 2)}:{P[j % 2] + 4*(i % 2) + 3}]"
        if j + 1 < NKV:
            ops = softmax_ops(j + 1)
            pend[j + 1] = ops[SPLIT:]
            step(t, bop=pb, fillers=ops[:SPLIT], lsum=True)
        else:
            step(t, bop=pb, lsum=True)
        return t + 1

    stamp()
    for j in range(4):
        t = iteration(j, t)
    stamp()
    a.s("s_mov_b32 s34, 0")
    a.flush()
    lq0 = [set(x) for x in a.lds_q]
    a.label(f"{name}_loop")
    tt = t
    for j in range(4, 8):
        tt = iteration(j, tt)
    a.flush()
    assert [set(x) for x in a.lds_q] == lq0, (a.lds_q, lq0)
    a.s("s_add_u32 s34, s34, 1")
    a.s("s_cmp_lt_u32 s34, 6")
    a.s(f"s_cbranch_scc1 {name}_loop")
    nbar[0] += 5 * 8
    stamp()
    t = NW_T + 1 + 2 * 28
    pend[28] = pend.pop(8)
    for j in range(28, 32):
        t = iteration(j, t)
    stamp()
    stamp(3)
    a.trans("v_rcp_f32", f"v{T2}", f"v{LACC}")
    for dt in range(8):
        for hf in range(2):
            ds = 2 * dt + hf
            for r in range(4):
                src = ACC + 16 * dt + 8 * hf + 2 * r
                a.v("v_mul_f32", f"v{src}", f"v{src}", f"v{T2}")
                a.v("v_mul_f32", f"v{src+1}", f"v{src+1}", f"v{T2}")
                a.v("v_cvt_pk_bf16_f32", f"v{T0 + (r & 1)}", f"v{src}", f"v{src+1}")
                a.v("v_accvgpr_write_b32", f"a{QA + 4*ds + r}", f"v{T0 + (r & 1)}")
    for p_ in range(2):
        for tt_ in range(8):
            if tt_ % 4 == 0:
                stamp(3)
            if t + 1 < NT:
                barrier()
            step(t, bop=lambda i, tt_=tt_: f"a[{QA+4*(2*tt_ + i % 2)}:{QA+4*(2*tt_ + i % 2)+3}]", first_c0=(tt_ == 0))
            t += 1
        stamp(3)
        for nt_ in range(7):
            for hf in range(2):
                base = ACC + 16 * nt_ + 8 * hf
                dst = S[0] + 4 * ((2 * nt_ + hf) % 8)
                for r in range(4):
                    a.v("v_cvt_pk_bf16_f32", f"v{dst+r}", f"v{base+2*r}", f"v{base+2*r+1}")
                a.s(f"s_add_u32 s38, s47, {(p_ * 14 + nt_ * 2 + hf) * 1024}")
                a.bstore("buffer_store_dwordx4", f"v[{dst}:{dst+3}]", f"v{OOFF}", "s[20:23]", "s38")
    assert t == NT
    assert nbar[0] == NT, (nbar[0], NT)
    if dbg:
        a.s("s_waitcnt vmcnt(0)")
        stamp(dbg)
        a.s("s_memrealtime s[92:93]")
        a.s("s_waitcnt lgkmcnt(0)")
        a.s("s_cmp_lg_u32 s2, 0")
        a.s(f"s_cbranch_scc1 {name}_nodbg")
        a.s("s_cmp_lg_u32 s24, 0")
        a.s(f"s_cbranch_scc1 {name}_nodbg")
        a.v("v_mov_b32", "v1", "0")
        for i in range(1, nst[0]):
            a.s(f"s_sub_u32 s{70+2*i}, s{70+2*i}, s70")
            a.v("v_mov_b32", "v2", f"s{70+2*i}")
            a.bstore("buffer_store_dword", "v2", "v1", "s[52:55]", "0", 4 * i)
        a.s("s_sub_u32 s92, s92, s90")
        a.v("v_mov_b32", "v2", "s92")
        a.bstore("buffer_store_dword", "v2", "v1", "s[52:55]", "0", 60)
        a.label(f"{name}_nodbg")
    a.s("s_endpgm")

    b = Asm()
    b.label(f"{name}_loader")
    b.v("v_and_b32", "v1", "63", "v0")
    b.v("v_lshrrev_b32", "v2", "5", "v1")
    b.v("v_and_b32", "v3", "31", "v1")
    for e in range(2):
        b.v("v_add_u32", "v4", f"{2*e}", "v2")
        b.v("v_and_b32", "v4", "3", "v4")
        b.v("v_lshlrev_b32", "v4", "2", "v4")
        b.v("v_xor_b32", "v4", "v4", "v3")
        b.v("v_lshlrev_b32", "v4", "4", "v4")
        b.v("v_lshl_add_u32", f"v{24+e}", "v2", "9", "v4")
        b.v("v_lshl_add_u32", f"v{26+e}", "v2", "13", "v4")
        b.v("v_mul_u32_u24", "v5", "896", "v2")
        b.v("v_add_u32", f"v{28+e}", "v5", "v4")
    b.s("s_lshl_b32 s35, s25, 19")
    b.s("s_lshl_b32 s36, s28, 9")
    b.s("s_mul_i32 s37, s28, 256*896")
    b.s("s_mov_b32 s39, 0")
    b.s("s_mov_b32 s40, s36")
    b.s("s_mov_b32 s41, s35")
    b.s("s_mov_b32 s42, s35")
    b.s("s_mov_b32 s43, s37")
    def issue(kind):
        src = {"W": "s40", "K": "s41", "V": "s42", "O": "s43"}[kind]
        stride = {"W": 16384, "K": 1024, "V": 1024, "O": 1792}[kind]
        for n in range(16):
            b.s(f"s_add_u32 m0, s39, {n * 1024}")
            b.s(f"s_add_u32 s38, {src}, {n * stride}")
            if kind == "W":
                b.bload_lds(f"v{26 + n % 2}", "s[16:19]", "s38")
            elif kind == "O":
                b.bload_lds(f"v{28 + n % 2}", "s[64:67]", "s38")
            elif kind == "K":
                b.bload_lds(f"v{16 + n % 8}", "s[8:11]", "s38", flags=" nt")
            else:
                b.bload_lds(f"v{24 + n % 2}", "s[12:15]", "s38", flags=" nt")
        b.s(f"s_add_u32 {src}, {src}, {16 * stride}")
        b.s("s_add_u32 s39, s39, 0x4000")
        b.s("s_and_b32 s39, s39, 0x1ffff")
    def wb(n=48):
        b.s(f"s_waitcnt vmcnt({n})")
        b.s("s_barrier")
    D = 4
    for tn in range(D):
        issue(order[tn][0])
    for e in range(8):
        b.v("v_add_u32", "v4", f"{2*e}", "v2")
        b.v("v_and_b32", "v4", "15", "v4")
        b.v("v_xor_b32", "v4", "v4", "v3")
        b.v("v_lshlrev_b32", "v4", "4", "v4")
        b.v("v_lshl_add_u32", f"v{16+e}", "v2", "9", "v4")
    def loop(label, trips, kinds):
        b.s("s_mov_b32 s34, 0")
        b.label(label)
        for k in kinds:
            wb()
            issue(k)
        b.s("s_add_u32 s34, s34, 1")
        b.s(f"s_cmp_lt_u32 s34, {trips}")
        b.s(f"s_cbranch_scc1 {label}")
    i = 0
    loop(f"{name}_lw", NW_T - D, ["W"]); i += NW_T - D
    wb(); issue("K"); i += 1
    loop(f"{name}_lm", NKV - 1, ["K", "V"]); i += 2 * (NKV - 1)
    wb(); issue("V"); i += 1
    loop(f"{name}_lo1", 8, ["O"]); i += 8
    b.s(f"s_add_u32 s43, s37, 448")
    loop(f"{name}_lo2", 8, ["O"]); i += 8
    assert i + D == NT, (i, NT)
    wb(48); wb(32); wb(16); wb(0)
    b.s("s_endpgm")
    a.lines[loader_pos:loader_pos] = b.lines
    a.label(f"{name}_end")
    a.s("s_endpgm")

def kd(name, vgpr=256, agpr=208, sgpr=96):
    return f""".section .rodata,"a"
.p2align 6
.amdhsa_kernel {name}
  .amdhsa_next_free_vgpr {vgpr + agpr}
  .amdhsa_next_free_sgpr {sgpr}
  .amdhsa_accum_offset {vgpr}
  .amdhsa_group_segment_fixed_size 0
  .amdhsa_kernarg_size 64
  .amdhsa_user_sgpr_count 2
  .amdhsa_user_sgpr_kernarg_segment_ptr 1
  .amdhsa_system_sgpr_workgroup_id_x 1
.end_amdhsa_kernel
.text
"""
```

```python
import sys, os
from asmlib import Asm
import attn_d4 as attn, reduce
DBG = int(os.environ.get('DBG', '0'))
PF = int(os.environ.get('PF', '6'))
SPLIT = int(os.environ.get('SPLIT', '36'))
a = Asm()
hdr0 = open("standalone__mha_block_cached__near_ridge.s.ref").read().split("; Override launch")[0]
hdr = hdr0 + f"; @launch kernel=attn_kernel grid=(256,1,1) block=(256,1,1) lds=131072\n"
hdr += f"; @launch kernel=reduce_kernel grid=(336,1,1) block=(256,1,1) lds=0\n"
a.raw('.amdgcn_target "amdgcn-amd-amdhsa--gfx950"')
a.raw(".text")
attn.gen_attn(a, "attn_kernel", dbg=DBG, PF=PF, SPLIT=SPLIT)
a2 = Asm()
reduce.gen_reduce(a2, "reduce_kernel", dbg=DBG)
out = sys.argv[1] if len(sys.argv) > 1 else "standalone__mha_block_cached__near_ridge.s"
open(out, "w").write(hdr + a.text() + attn.kd("attn_kernel") + a2.text() + attn.kd("reduce_kernel", vgpr=84, agpr=0, sgpr=48))
print("written", out, "nops", a.nnop)
```
